```python
import torch

def _softmax(x, axis=-1):
    return torch.softmax(x, dim=axis)
def _gelu(x):
    return torch.nn.functional.gelu(x, approximate="tanh")
def _silu(x):
    return torch.nn.functional.silu(x)
def _sigmoid(x):
    return torch.sigmoid(x)
def _layernorm(x, axis=-1, eps=1e-5):
    m = x.mean(dim=axis, keepdim=True)
    v = x.var(dim=axis, keepdim=True, unbiased=False)
    return (x - m) / torch.sqrt(v + eps)
def _scatter_add(tgt, idx, src, axis=0):
    return tgt.clone().index_add_(axis, idx, src)
def _segment_sum(src, seg, n):
    out = torch.zeros((n,) + src.shape[1:], dtype=src.dtype)
    return out.index_add_(0, seg, src)
def _pad(x, pw):
    flat = tuple(v for pair in reversed(pw) for v in pair)
    return torch.nn.functional.pad(x, flat)

kernel_name = 'standalone__sliding_local_chunked__prompt'

def setup_inputs():

    _w = (lambda a: (lambda t: t.to(torch.bfloat16) if t.is_floating_point() else t)(torch.as_tensor(a)))
    B, H, D = 1, 32, 128
    W = 16
    S = max(W, (2048 // W) * W)
    return {
        "q": _w((lambda *s: torch.randn(*s, dtype=torch.bfloat16) * 0.8)(B, H, S, D)),
        "k": _w((lambda *s: torch.randn(*s, dtype=torch.bfloat16) * 0.8)(B, H, S, D)),
        "v": _w((lambda *s: torch.randn(*s, dtype=torch.bfloat16) * 0.05)(B, H, S, D)),
        "window": W,
    }

def reference(q, k, v, window):
    B, H, S, D = q.shape
    w = window
    nb = S // w
    scale = D ** -0.5
    qb = q.reshape(B, H, nb, w, D)
    kp = _pad(k, ((0, 0), (0, 0), (w, 0), (0, 0)))
    vp = _pad(v, ((0, 0), (0, 0), (w, 0), (0, 0)))
    kpb = kp.reshape(B, H, nb + 1, w, D)
    vpb = vp.reshape(B, H, nb + 1, w, D)
    kb = torch.concatenate([kpb[:, :, :-1], kpb[:, :, 1:]], axis=3)
    vb = torch.concatenate([vpb[:, :, :-1], vpb[:, :, 1:]], axis=3)
    scores = torch.einsum("bhnqd,bhnkd->bhnqk", qb, kb) * scale
    bidx = torch.arange(nb)
    qpos = bidx[:, None] * w + torch.arange(w)[None, :]
    kpos = bidx[:, None] * w + torch.arange(2 * w)[None, :] - w
    diff = qpos[:, :, None] - kpos[:, None, :]
    mask = (diff >= 0) & (diff < w) & (kpos[:, None, :] >= 0)
    scores = torch.where(mask[None, None], scores, -1e9)
    p = _softmax(scores, axis=-1)
    out = torch.einsum("bhnqk,bhnkd->bhnqd", p, vb)
    return out.reshape(B, H, S, D)
```

```python
import struct
import stamp

NAME = "standalone__sliding_local_chunked__prompt"
def f32bits(x): return struct.unpack("<I", struct.pack("<f", x))[0]

HEADER = """; Kernarg layout for this problem (56 bytes, ptrs only, base s[0:1]):
"""

def softmax(e, T, V_A, V_B, V_SP, V_SC, V_P, V_M01, V_M23, S_MASK, S_HI16, S_SCALE, S_LOG2E, mimic):
    for r in range(4):
        e(f"    v_cndmask_b32 v{T+r}, v{V_SP+r}, v{V_SC+r}, s[{S_MASK+2*r}:{S_MASK+2*r+1}]")
    if mimic:
        e(f"    v_cvt_pk_bf16_f32 v{V_A}, v{T}, v{T+1}")
        e(f"    v_cvt_pk_bf16_f32 v{V_B}, v{T+2}, v{T+3}")
        e(f"    v_lshlrev_b32 v{T}, 16, v{V_A}")
        e(f"    v_and_b32 v{T+1}, s{S_HI16}, v{V_A}")
        e(f"    v_lshlrev_b32 v{T+2}, 16, v{V_B}")
        e(f"    v_and_b32 v{T+3}, s{S_HI16}, v{V_B}")
        for r in range(4):
            e(f"    v_mul_f32 v{T+r}, s{S_SCALE}, v{T+r}")
        e(f"    v_cvt_pk_bf16_f32 v{V_A}, v{T}, v{T+1}")
        e(f"    v_cvt_pk_bf16_f32 v{V_B}, v{T+2}, v{T+3}")
        e(f"    v_lshlrev_b32 v{T}, 16, v{V_A}")
        e(f"    v_and_b32 v{T+1}, s{S_HI16}, v{V_A}")
        e(f"    v_lshlrev_b32 v{T+2}, 16, v{V_B}")
        e(f"    v_and_b32 v{T+3}, s{S_HI16}, v{V_B}")
    e(f"    v_max3_f32 v{V_A}, v{T}, v{T+1}, v{T+2}")
    e(f"    v_max_f32 v{V_A}, v{V_A}, v{T+3}")
    e(f"    v_mov_b32 v{V_B}, v{V_A}")
    e(f"    s_nop 1")
    e(f"    v_permlane16_swap_b32 v{V_A}, v{V_B}")
    e(f"    s_nop 1")
    e(f"    v_max_f32 v{V_A}, v{V_A}, v{V_B}")
    e(f"    v_mov_b32 v{V_B}, v{V_A}")
    e(f"    s_nop 1")
    e(f"    v_permlane32_swap_b32 v{V_A}, v{V_B}")
    e(f"    s_nop 1")
    e(f"    v_max_f32 v{V_A}, v{V_A}, v{V_B}")
    for r in range(4):
        e(f"    v_sub_f32 v{T+r}, v{T+r}, v{V_A}")
    for r in range(4):
        e(f"    v_mul_f32 v{T+r}, s{S_LOG2E}, v{T+r}")
    for r in range(4):
        e(f"    v_exp_f32 v{T+r}, v{T+r}")
    e(f"    s_nop 0")
    e(f"    v_add_f32 v{V_A}, v{T}, v{T+1}")
    e(f"    v_add_f32 v{V_B}, v{T+2}, v{T+3}")
    e(f"    v_add_f32 v{V_A}, v{V_A}, v{V_B}")
    e(f"    v_mov_b32 v{V_B}, v{V_A}")
    e(f"    s_nop 1")
    e(f"    v_permlane16_swap_b32 v{V_A}, v{V_B}")
    e(f"    s_nop 1")
    e(f"    v_add_f32 v{V_A}, v{V_A}, v{V_B}")
    e(f"    v_mov_b32 v{V_B}, v{V_A}")
    e(f"    s_nop 1")
    e(f"    v_permlane32_swap_b32 v{V_A}, v{V_B}")
    e(f"    s_nop 1")
    e(f"    v_add_f32 v{V_A}, v{V_A}, v{V_B}")
    e(f"    v_rcp_f32 v{V_A}, v{V_A}")
    e(f"    s_nop 0")
    for r in range(4):
        e(f"    v_mul_f32 v{T+r}, v{T+r}, v{V_A}")
    e(f"    v_cvt_pk_bf16_f32 v{V_A}, v{T}, v{T+1}")
    e(f"    v_cvt_pk_bf16_f32 v{V_B}, v{T+2}, v{T+3}")
    e(f"    v_and_b32 v{V_P+2}, v{V_M01}, v{V_A}")
    e(f"    v_and_b32 v{V_P+3}, v{V_M23}, v{V_B}")
    e(f"    v_xor_b32 v{V_P}, v{V_P+2}, v{V_A}")
    e(f"    v_xor_b32 v{V_P+1}, v{V_P+3}, v{V_B}")

def gen(W=16, fq="nt", fk="nt", fv="nt", fh="nt", flast=None, st="sc1", xcd=True, mimic=True, sync="flag",
        ldsmin=0, stamps=False, order="KQV", latebar=False, touch=None, prio=None, stouch="", vtouch=False, rot=None, midbar=False, storebar=0, thr=None, st2=None, st2w=8, sblo=0, sleep=True):
    NWG = 4096 // W
    FL = (W+1)*8192
    LDS = FL + (8*(W+1) if sync == "flag" else 0)
    LDS = max(LDS, ldsmin)
    L = []; e = L.append
    e(HEADER.rstrip())
    e(f"; @launch grid=({NWG},1,1) block=({64*W},1,1) lds={LDS}")
    e('.amdgcn_target "amdgcn-amd-amdhsa--gfx950"')
    e(".text"); e(f".globl {NAME}_kernel"); e(".p2align 8"); e(f".type {NAME}_kernel,@function"); e(f"{NAME}_kernel:")
    SQ, SK, SV, SO = 16, 20, 24, 28
    S_HALO, S_CUR = 32, 33
    S_LDS = 34
    S_F = 35
    S_WG = 15
    S_MASK = 40; S_PLO, S_PHI = 48, 49; S_SCALE, S_LOG2E = 50, 51; S_CINIT = 52; S_HI16 = 53
    S_M5, S_MA, S_M3, S_MC = 54, 56, 58, 60
    V_QK, V_VO = 1, 2
    V_M01, V_M23 = 3, 4
    V_F = 5
    V_T = 6; V_A, V_B = 10, 11; V_P = 12; V_SP, V_SC = 16, 20; V_CI = 24
    V_KA = 28; V_GK = 32; V_VA = 36; V_FO, V_FP, V_ONE = 37, 38, 39; V_GV = 40; V_Z = 42
    VQ = 44; VKP = 60; VKC = 76; VVP = 92; VVC = 108
    VTMP = VVP
    VP = VKP
    VACC = VVP
    nvgpr = 124
    def rng(b, n): return f"v[{b}:{b+n-1}]"

    e("    ; STAMP 0")
    e(f"    s_load_dwordx2 s[{SK}:{SK+1}], s[0:1], 8")
    e(f"    s_load_dwordx2 s[{SQ}:{SQ+1}], s[0:1], 0")
    e(f"    s_load_dwordx2 s[{SV}:{SV+1}], s[0:1], 16")
    e(f"    s_load_dwordx2 s[{SO}:{SO+1}], s[0:1], 32")
    e(f"    s_cmp_ge_u32 s2, {NWG}")
    e(f"    s_cbranch_scc1 L_exit")
    e(f"    v_lshrrev_b32 v1, 6, v0")
    e(f"    v_and_b32 v0, 63, v0")
    if storebar:
        e(f"    v_readfirstlane_b32 s10, v1")
    if rot is not None:
        e(f"    s_lshr_b32 s11, s2, {rot[0]}")
        e(f"    s_mul_i32 s11, s11, {rot[1]}")
        e(f"    v_add_u32 v1, s11, v1")
        e(f"    v_and_b32 v1, {W-1}, v1")
        e(f"    s_nop 0")
    e(f"    v_readfirstlane_b32 s3, v1")
    if sync == "flag":
        e(f"    v_lshlrev_b32 v{V_FP}, 3, v1")
        e(f"    v_add_u32 v{V_FO}, {FL+8}, v{V_FP}")
        e(f"    v_mov_b32 v{V_Z}, 0")
        e(f"    v_mov_b32 v{V_Z+1}, 0")
        e(f"    s_mov_b64 exec, 1")
        e(f"    ds_write_b64 v{V_FO}, {rng(V_Z,2)}")
        e(f"    s_mov_b64 exec, -1")
        e(f"    v_max_u32 v{V_FP}, 8, v{V_FP}")
        e(f"    v_add_u32 v{V_FP}, {FL}, v{V_FP}")
        e(f"    v_mov_b32 v{V_ONE}, 1")
    if xcd:
        e(f"    s_and_b32 s12, s2, 7")
        e(f"    s_lshr_b32 s13, s2, 3")
        e(f"    s_mul_i32 s12, s12, {NWG//8}")
        e(f"    s_add_u32 s12, s12, s13")
    else:
        e(f"    s_mov_b32 s12, s2")
    for s in (SQ, SK, SV, SO):
        e(f"    s_mov_b32 s{s+2}, 0x1000000")
        e(f"    s_mov_b32 s{s+3}, 0x00020000")
    e(f"    v_lshrrev_b32 v4, 4, v0")
    e(f"    v_and_b32 v3, 15, v0")
    e(f"    s_mul_i32 s12, s12, {W}")
    e(f"    s_lshl_b32 s{S_WG}, s12, 12")
    if vtouch:
        e(f"    s_mov_b32 s38, 0x1000000")
        e(f"    s_mov_b32 s39, 0x00020000")
    e(f"    s_add_u32 s12, s12, s3")
    e(f"    s_mov_b32 s14, s12")
    e(f"    s_lshl_b32 s{S_CUR}, s12, 12")
    e(f"    s_sub_u32 s{S_HALO}, s{S_CUR}, 0x1000")
    e(f"    s_and_b32 s13, s12, 127")
    e(f"    s_cselect_b32 s{S_HALO}, s{S_HALO}, 0x1000000")
    e(f"    s_cselect_b32 s{S_CINIT}, 0, 0x{f32bits(-1e30):08x}")
    e(f"    s_lshl_b32 s{S_LDS}, s3, 13")
    e(f"    v_lshlrev_b32 v6, 2, v4")
    e(f"    v_xor_b32 v6, v6, v3")
    e(f"    v_lshlrev_b32 v6, 4, v6")
    e(f"    v_lshl_add_u32 v{V_GK}, v4, 8, v6")
    for j in range(1, 4):
        e(f"    v_xor_b32 v{V_GK+j}, {j<<4}, v{V_GK}")
    e(f"    v_lshlrev_b32 v{V_GV}, 4, v0")
    e(f"    v_bfe_u32 v6, v0, 2, 2")
    e(f"    v_lshlrev_b32 v6, 10, v6")
    e(f"    v_and_b32 v7, 3, v0")
    e(f"    v_lshl_add_u32 v6, v4, 6, v6")
    e(f"    v_lshl_add_u32 v{V_QK}, v7, 4, v6")
    e(f"    s_add_u32 s4, s{S_LDS}, 8192")
    e(f"    s_add_u32 s5, s{S_LDS}, 12288")
    e(f"    s_waitcnt lgkmcnt(0)")
    if sync == "flag" and not latebar and not midbar:
        e(f"    s_barrier")
    e("    ; STAMP 1")
    for i, t in enumerate(stouch):
        sb = {"Q": SQ, "K": SK, "V": SV, "O": SO}[t]
        e(f"    s_load_dword s{6+i}, s[{sb}:{sb+1}], s{S_WG}")
    if vtouch:
        e(f"    s_bitcmp1_b32 s2, 3")
        e(f"    s_cselect_b64 s[36:37], s[{SQ}:{SQ+1}], s[{SK}:{SK+1}]")
        e(f"    s_cselect_b64 s[6:7], s[{SV}:{SV+1}], s[{SO}:{SO+1}]")
        e(f"    s_bitcmp1_b32 s2, 4")
        e(f"    s_cselect_b64 s[36:37], s[36:37], s[6:7]")
        e(f"    buffer_load_dword v{V_F}, off, s[36:39], s{S_WG}")
    e(f"    s_cmp_lg_u32 s3, 0")
    e(f"    s_cbranch_scc1 L_nohalo")
    e(f"    s_mov_b32 m0, 0")
    e(f"    s_nop 0")
    for j in range(4):
        e(f"    buffer_load_dwordx4 v{V_GK+j}, s[{SK}:{SK+3}], s{S_HALO} offen offset:{1024*j} {fh} lds")
    e(f"    s_mov_b32 m0, 4096")
    e(f"    s_nop 0")
    for j in range(4):
        e(f"    buffer_load_dwordx4 v{V_GV}, s[{SV}:{SV+3}], s{S_HALO} offen offset:{1024*j} {fh} lds")
    if touch is not None:
        e(f"    s_mov_b64 exec, 1")
        e(f"    buffer_load_dword v{V_F}, v{V_GV}, s[{SO}:{SO+3}], s{S_CUR} offen {touch}")
        e(f"    s_mov_b64 exec, -1")
    e("L_nohalo:")
    def issue(fk_, fv_):
        for o in order:
            if o == "K":
                e(f"    s_mov_b32 m0, s4")
                e(f"    s_nop 0")
                for j in range(4):
                    e(f"    buffer_load_dwordx4 v{V_GK+j}, s[{SK}:{SK+3}], s{S_CUR} offen offset:{1024*j} {fk_} lds")
                    if midbar and j == midbar-1: e(f"    s_barrier")
            elif o == "Q":
                for j in range(4):
                    e(f"    buffer_load_dwordx4 {rng(VQ+4*j,4)}, v{V_QK}, s[{SQ}:{SQ+3}], s{S_CUR} offen offset:{256*j} {fq}")
            else:
                e(f"    s_mov_b32 m0, s5")
                e(f"    s_nop 0")
                for j in range(4):
                    e(f"    buffer_load_dwordx4 v{V_GV}, s[{SV}:{SV+3}], s{S_CUR} offen offset:{1024*j} {fv_} lds")
    if flast is not None:
        e(f"    s_cmp_eq_u32 s3, {W-1}")
        e(f"    s_cbranch_scc1 L_last")
        issue(fk, fv)
        e(f"    s_branch L_issued")
        e("L_last:")
        issue(flast, flast)
        e("L_issued:")
    else:
        issue(fk, fv)
    e("    ; STAMP 2")
    e(f"    v_lshlrev_b32 v2, 10, v4")
    e(f"    v_lshl_add_u32 v{V_VO}, v3, 4, v2")
    e(f"    v_add_u32 v{V_VA}, s{S_LDS}, v{V_VO}")
    e(f"    v_and_b32 v6, 3, v3")
    e(f"    v_xor_b32 v6, v6, v4")
    e(f"    v_lshrrev_b32 v7, 2, v3")
    e(f"    v_lshl_add_u32 v6, v6, 2, v7")
    e(f"    v_lshlrev_b32 v6, 4, v6")
    e(f"    v_lshl_add_u32 v6, v3, 8, v6")
    e(f"    v_add_u32 v{V_KA}, s{S_LDS}, v6")
    for j in range(1, 4):
        e(f"    v_xor_b32 v{V_KA+j}, {j<<4}, v{V_KA}")
    for r in range(4):
        m = 0
        for l in range(64):
            if 4*(l >> 4) + r <= (l & 15): m |= 1 << l
        e(f"    s_mov_b32 s{S_MASK+2*r}, 0x{m & 0xffffffff:08x}")
        e(f"    s_mov_b32 s{S_MASK+2*r+1}, 0x{m >> 32:08x}")
    for s, c in ((S_M5, 0x55555555), (S_MA, 0xaaaaaaaa), (S_M3, 0x33333333), (S_MC, 0xcccccccc)):
        e(f"    s_mov_b32 s{s}, 0x{c:08x}")
        e(f"    s_mov_b32 s{s+1}, s{s}")
    e(f"    s_mov_b32 s{S_PLO}, 0x05040100")
    e(f"    s_mov_b32 s{S_PHI}, 0x07060302")
    e(f"    s_mov_b32 s{S_SCALE}, 0x{f32bits(128**-0.5):08x}")
    e(f"    s_mov_b32 s{S_LOG2E}, 0x{f32bits(1.4426950408889634 * (1.0 if mimic else 128**-0.5)):08x}")
    e(f"    s_mov_b32 s{S_HI16}, 0xffff0000")
    e(f"    v_mov_b32 v{V_A}, 0xffff")
    e(f"    v_mov_b32 v{V_B}, 0xffff0000")
    e(f"    v_cndmask_b32 v{V_T}, 0, v{V_A}, s[{S_MASK}:{S_MASK+1}]")
    e(f"    v_cndmask_b32 v{V_T+1}, 0, v{V_B}, s[{S_MASK+2}:{S_MASK+3}]")
    e(f"    v_cndmask_b32 v{V_T+2}, 0, v{V_A}, s[{S_MASK+4}:{S_MASK+5}]")
    e(f"    v_cndmask_b32 v{V_T+3}, 0, v{V_B}, s[{S_MASK+6}:{S_MASK+7}]")
    e(f"    v_or_b32 v{V_M01}, v{V_T}, v{V_T+1}")
    e(f"    v_or_b32 v{V_M23}, v{V_T+2}, v{V_T+3}")
    for r in range(4):
        e(f"    v_mov_b32 v{V_CI+r}, s{S_CINIT}")
    if sync == "flag" and latebar:
        e(f"    s_barrier")
    if storebar and storebar < W:
        e(f"    s_cmp_lt_u32 s10, {storebar}")
        e(f"    s_cbranch_scc1 L_nob1")
        e(f"    s_barrier")
        e("L_nob1:")
    pos = {o: i for i, o in enumerate(order)}
    def vm(o): return 4*(2-pos[o])
    DP1 = "quad_perm:[1,0,3,2] row_mask:0xf bank_mask:0xf"
    DP2 = "quad_perm:[2,3,0,1] row_mask:0xf bank_mask:0xf"
    def transpose(R):
        T = VTMP
        e(f"    s_mov_b64 vcc, s[{S_M5}:{S_M5+1}]")
        for j0 in (0, 2):
            for x in range(4): e(f"    v_cndmask_b32_dpp v{T+4*j0+x}, v{R+4*(j0+1)+x}, v{R+4*j0+x}, vcc {DP1}")
        e(f"    s_mov_b64 vcc, s[{S_MA}:{S_MA+1}]")
        for j0 in (0, 2):
            for x in range(4): e(f"    v_cndmask_b32_dpp v{T+4*(j0+1)+x}, v{R+4*j0+x}, v{R+4*(j0+1)+x}, vcc {DP1}")
        e(f"    s_mov_b64 vcc, s[{S_M3}:{S_M3+1}]")
        for j0 in (0, 1):
            for x in range(4): e(f"    v_cndmask_b32_dpp v{R+4*j0+x}, v{T+4*(j0+2)+x}, v{T+4*j0+x}, vcc {DP2}")
        e(f"    s_mov_b64 vcc, s[{S_MC}:{S_MC+1}]")
        for j0 in (0, 1):
            for x in range(4): e(f"    v_cndmask_b32_dpp v{R+4*(j0+2)+x}, v{T+4*j0+x}, v{T+4*(j0+2)+x}, vcc {DP2}")
    def rdKp():
        for j in range(4): e(f"    ds_read_b128 {rng(VKP+4*j,4)}, v{V_KA+j}")
    def rdKc():
        for j in range(4): e(f"    ds_read_b128 {rng(VKC+4*j,4)}, v{V_KA+j} offset:8192")
    def rdVp():
        for r in range(4): e(f"    ds_read_b128 {rng(VVP+4*r,4)}, v{V_VA} offset:{4096+256*r}")
    def rdVc():
        for r in range(4): e(f"    ds_read_b128 {rng(VVC+4*r,4)}, v{V_VA} offset:{12288+256*r}")
    def publish(off):
        e(f"    s_mov_b64 exec, 1")
        e(f"    ds_write_b32 v{V_FO}, v{V_ONE} offset:{off}")
        e(f"    s_mov_b64 exec, -1")
    assert order in ("KQV", "QKV")
    if order == "QKV":
        e(f"    s_waitcnt vmcnt({vm('Q')})")
        transpose(VQ)
    e(f"    s_waitcnt vmcnt({vm('K')})")
    e("    ; STAMP 3")
    if sync == "flag":
        publish(0)
        e(f"    ds_read_b32 v{V_F}, v{V_FP}")
        rdKp(); rdKc()
    else:
        rdKc()
        if order == "QKV":
            e(f"    s_barrier"); rdKp()
    if order == "KQV":
        e(f"    s_waitcnt vmcnt({vm('Q')})")
        transpose(VQ)
        if sync != "flag":
            e(f"    s_barrier"); rdKp()
    e(f"    s_waitcnt lgkmcnt(0)")
    if sync == "flag":
        e(f"    v_readfirstlane_b32 s{S_F}, v{V_F}")
        e(f"    s_cmp_eq_u32 s{S_F}, 1")
        e(f"    s_cbranch_scc0 L_kspin")
        e("L_kok:")
    for j in range(4):
        csc = "0" if j == 0 else rng(V_SC, 4)
        csp = rng(V_CI, 4) if j == 0 else rng(V_SP, 4)
        e(f"    v_mfma_f32_16x16x32_bf16 {rng(V_SC,4)}, {rng(VKC+4*j,4)}, {rng(VQ+4*j,4)}, {csc}")
        e(f"    v_mfma_f32_16x16x32_bf16 {rng(V_SP,4)}, {rng(VKP+4*j,4)}, {rng(VQ+4*j,4)}, {csp}")
    e(f"    s_nop 7")
    softmax(e, V_T, V_A, V_B, V_SP, V_SC, V_P, V_M01, V_M23, S_MASK, S_HI16, S_SCALE, S_LOG2E, mimic)
    e("    ; STAMP 4")
    e(f"    s_waitcnt vmcnt(0)")
    if sync == "flag":
        publish(4)
        rdVc()
        e(f"    ds_read_b32 v{V_F}, v{V_FP} offset:4")
        rdVp()
        e(f"    s_waitcnt lgkmcnt(5)")
    else:
        rdVc()
        e(f"    s_barrier")
        rdVp()
        e(f"    s_waitcnt lgkmcnt(4)")
    def perms(src, half):
        for m in range(4):
            for s, sel in ((0, S_PLO), (1, S_PHI)):
                tt = 2*m + s
                e(f"    v_perm_b32 v{VP+4*tt+half}, v{src+4+m}, v{src+m}, s{sel}")
                e(f"    v_perm_b32 v{VP+4*tt+half+1}, v{src+12+m}, v{src+8+m}, s{sel}")
    perms(VVC, 2)
    e(f"    s_waitcnt lgkmcnt(0)")
    if sync == "flag":
        e(f"    v_readfirstlane_b32 s{S_F}, v{V_F}")
        e(f"    s_cmp_eq_u32 s{S_F}, 1")
        e(f"    s_cbranch_scc0 L_vspin")
        e("L_vok:")
    perms(VVP, 0)
    e("    ; STAMP 5")
    e(f"    s_nop 1")
    for tt in range(8):
        e(f"    v_mfma_f32_16x16x32_bf16 {rng(VACC+4*tt,4)}, {rng(V_P,4)}, {rng(VP+4*tt,4)}, 0")
    e(f"    s_nop 7")
    vout = VQ
    if storebar:
        for r in range(4):
            for m in range(4):
                e(f"    v_cvt_pk_bf16_f32 v{vout+4*r+m}, v{VACC+4*(2*m)+r}, v{VACC+4*(2*m+1)+r}")
        if storebar < W:
            e(f"    s_cmp_ge_u32 s10, {storebar}")
            e(f"    s_cbranch_scc1 L_nob2")
        if sblo:
            e(f"    s_cmp_lt_u32 s10, {sblo}")
            e(f"    s_cbranch_scc1 L_nob2")
        e(f"    s_barrier")
        e("L_nob2:")
    def stores(pol):
        for r in range(4):
            for m in range(4):
                if not storebar: e(f"    v_cvt_pk_bf16_f32 v{vout+4*r+m}, v{VACC+4*(2*m)+r}, v{VACC+4*(2*m+1)+r}")
            if thr is not None and r > thr: e(f"    s_waitcnt vmcnt({thr})")
            e(f"    buffer_store_dwordx4 {rng(vout+4*r,4)}, v{V_VO}, s[{SO}:{SO+3}], s{S_CUR} offen offset:{256*r} {pol}".rstrip())
    if st2 is not None:
        e(f"    s_cmp_lt_u32 s3, {st2w}")
        e(f"    s_cbranch_scc1 L_st2")
        stores(st)
        e(f"    s_branch L_stdone")
        e("L_st2:")
        stores(st2)
        e("L_stdone:")
    else:
        stores(st)
    e("    ; STAMP 6")
    e("L_end:")
    e("L_exit:")
    e("    s_endpgm")
    if sync == "flag":
        for nm, off, rd in (("k", 0, rdKp), ("v", 4, rdVp)):
            e(f"L_{nm}spin:")
            if sleep: e(f"    s_sleep 1")
            e(f"    ds_read_b32 v{V_F}, v{V_FP} offset:{off}")
            e(f"    s_waitcnt lgkmcnt(0)")
            e(f"    v_readfirstlane_b32 s{S_F}, v{V_F}")
            e(f"    s_cmp_eq_u32 s{S_F}, 1")
            e(f"    s_cbranch_scc0 L_{nm}spin")
            rd()
            e(f"    s_waitcnt lgkmcnt(0)")
            e(f"    s_branch L_{nm}ok")
    e('.section .rodata,"a"')
    e(".p2align 6")
    e(f".amdhsa_kernel {NAME}_kernel")
    e(f"  .amdhsa_next_free_vgpr {nvgpr}")
    e(f"  .amdhsa_next_free_sgpr 64")
    e(f"  .amdhsa_accum_offset {(nvgpr+3)//4*4}")
    e(f"  .amdhsa_group_segment_fixed_size 0")
    e(f"  .amdhsa_kernarg_size 56")
    e(f"  .amdhsa_user_sgpr_count 2")
    e(f"  .amdhsa_user_sgpr_kernarg_segment_ptr 1")
    e(f"  .amdhsa_system_sgpr_workgroup_id_x 1")
    e(f"  .amdhsa_float_denorm_mode_32 3")
    e(f".end_amdhsa_kernel")
    s = "\n".join(L) + "\n"
    if stamps: s = stamp.add_stamps(s)
    else: s = "\n".join(l for l in s.split("\n") if "; STAMP" not in l)
    return s
```

```python
import re
def add_stamps(src, wave_sreg="s14"):
    out=[]
    for line in src.split("\n"):
        m=re.match(r"\s*; STAMP (\d+)", line)
        if m:
            n=int(m.group(1))
            if n==4:
                out.append("    s_getreg_b32 s72, hwreg(HW_REG_HW_ID)"); out.append("    s_getreg_b32 s73, hwreg(HW_REG_XCC_ID)"); continue
            out.append(f"    s_memrealtime s[{64+2*n}:{65+2*n}]")
            if n==0: out.append("    s_load_dwordx2 s[80:81], s[0:1], 48")
            if n==1: out.append("    s_load_dword s85, s[80:81], 0")
            continue
        if line.startswith("L_end:"):
            out.append("    s_waitcnt vmcnt(0)")
            out.append("    s_memrealtime s[78:79]")
            out.append("    s_mov_b32 s82, 0x1000000")
            out.append("    s_mov_b32 s83, 0x00020000")
            out.append(f"    s_lshl_b32 s84, {wave_sreg}, 6")
            out.append("    s_waitcnt lgkmcnt(0)")
            for i in range(16):
                out.append(f"    v_mov_b32 v{8+i}, s{64+i}")
            out.append("    v_mov_b32 v0, 0")
            out.append("    s_mov_b64 exec, 1")
            for i in range(4):
                out.append(f"    buffer_store_dwordx4 v[{8+4*i}:{11+4*i}], v0, s[80:83], s84 offen offset:{16*i}")
            out.append("    s_waitcnt vmcnt(0)")
        line=re.sub(r"amdhsa_next_free_sgpr \d+","amdhsa_next_free_sgpr 96",line)
        out.append(line)
    return "\n".join(out)
```

```python
import sys; sys.path.insert(0,'gen')
import gen3
B=dict(W=16,fh="",flast="",latebar=True,sleep=False)
V={
 'j_nosleep': dict(B),
 'j_rot1': dict(B,rot=(3,1)),
 'j_qkv': dict(B,order="QKV"),
 'j_rot1_qkv': dict(B,rot=(3,1),order="QKV"),
 'k_rot1_qkv_sb16': dict(B,rot=(3,1),order="QKV",storebar=16),
 'k_rot3_qkv': dict(B,rot=(3,3),order="QKV"),
 'k_rot4_1_qkv': dict(B,rot=(4,1),order="QKV"),
 'k_rot0_1_qkv': dict(B,rot=(0,1),order="QKV"),
 'k_rot1_qkv_nox': dict(B,rot=(3,1),order="QKV",xcd=False),
 'k_rot1_qkv_vt': dict(B,rot=(3,1),order="QKV",vtouch=True),
}
for k,a in V.items():
    open(f'p/{k}.s','w').write(gen3.gen(**a))
print(" ".join(f"p/{k}.s" for k in V))
```

```python
import struct
import stamp

NAME = "standalone__sliding_local_chunked__prompt"
def f32bits(x): return struct.unpack("<I", struct.pack("<f", x))[0]

HEADER = """; Kernarg layout for this problem (56 bytes, ptrs only, base s[0:1]):
"""

def softmax(e, T, V_A, V_B, V_SP, V_SC, V_P, V_M01, V_M23, S_MASK, S_HI16, S_SCALE, S_LOG2E, mimic):
    for r in range(4):
        e(f"    v_cndmask_b32 v{T+r}, v{V_SP+r}, v{V_SC+r}, s[{S_MASK+2*r}:{S_MASK+2*r+1}]")
    if mimic:
        e(f"    v_cvt_pk_bf16_f32 v{V_A}, v{T}, v{T+1}")
        e(f"    v_cvt_pk_bf16_f32 v{V_B}, v{T+2}, v{T+3}")
        e(f"    v_lshlrev_b32 v{T}, 16, v{V_A}")
        e(f"    v_and_b32 v{T+1}, s{S_HI16}, v{V_A}")
        e(f"    v_lshlrev_b32 v{T+2}, 16, v{V_B}")
        e(f"    v_and_b32 v{T+3}, s{S_HI16}, v{V_B}")
        for r in range(4):
            e(f"    v_mul_f32 v{T+r}, s{S_SCALE}, v{T+r}")
        e(f"    v_cvt_pk_bf16_f32 v{V_A}, v{T}, v{T+1}")
        e(f"    v_cvt_pk_bf16_f32 v{V_B}, v{T+2}, v{T+3}")
        e(f"    v_lshlrev_b32 v{T}, 16, v{V_A}")
        e(f"    v_and_b32 v{T+1}, s{S_HI16}, v{V_A}")
        e(f"    v_lshlrev_b32 v{T+2}, 16, v{V_B}")
        e(f"    v_and_b32 v{T+3}, s{S_HI16}, v{V_B}")
    e(f"    v_max3_f32 v{V_A}, v{T}, v{T+1}, v{T+2}")
    e(f"    v_max_f32 v{V_A}, v{V_A}, v{T+3}")
    e(f"    v_mov_b32 v{V_B}, v{V_A}")
    e(f"    s_nop 1")
    e(f"    v_permlane16_swap_b32 v{V_A}, v{V_B}")
    e(f"    s_nop 1")
    e(f"    v_max_f32 v{V_A}, v{V_A}, v{V_B}")
    e(f"    v_mov_b32 v{V_B}, v{V_A}")
    e(f"    s_nop 1")
    e(f"    v_permlane32_swap_b32 v{V_A}, v{V_B}")
    e(f"    s_nop 1")
    e(f"    v_max_f32 v{V_A}, v{V_A}, v{V_B}")
    for r in range(4):
        e(f"    v_sub_f32 v{T+r}, v{T+r}, v{V_A}")
    for r in range(4):
        e(f"    v_mul_f32 v{T+r}, s{S_LOG2E}, v{T+r}")
    for r in range(4):
        e(f"    v_exp_f32 v{T+r}, v{T+r}")
    e(f"    s_nop 0")
    e(f"    v_add_f32 v{V_A}, v{T}, v{T+1}")
    e(f"    v_add_f32 v{V_B}, v{T+2}, v{T+3}")
    e(f"    v_add_f32 v{V_A}, v{V_A}, v{V_B}")
    e(f"    v_mov_b32 v{V_B}, v{V_A}")
    e(f"    s_nop 1")
    e(f"    v_permlane16_swap_b32 v{V_A}, v{V_B}")
    e(f"    s_nop 1")
    e(f"    v_add_f32 v{V_A}, v{V_A}, v{V_B}")
    e(f"    v_mov_b32 v{V_B}, v{V_A}")
    e(f"    s_nop 1")
    e(f"    v_permlane32_swap_b32 v{V_A}, v{V_B}")
    e(f"    s_nop 1")
    e(f"    v_add_f32 v{V_A}, v{V_A}, v{V_B}")
    e(f"    v_rcp_f32 v{V_A}, v{V_A}")
    e(f"    s_nop 0")
    for r in range(4):
        e(f"    v_mul_f32 v{T+r}, v{T+r}, v{V_A}")
    e(f"    v_cvt_pk_bf16_f32 v{V_A}, v{T}, v{T+1}")
    e(f"    v_cvt_pk_bf16_f32 v{V_B}, v{T+2}, v{T+3}")
    e(f"    v_and_b32 v{V_P+2}, v{V_M01}, v{V_A}")
    e(f"    v_and_b32 v{V_P+3}, v{V_M23}, v{V_B}")
    e(f"    v_xor_b32 v{V_P}, v{V_P+2}, v{V_A}")
    e(f"    v_xor_b32 v{V_P+1}, v{V_P+3}, v{V_B}")

def gen(W=16, fq="nt", fk="nt", fv="nt", fh="nt", flast=None, st="sc1", xcd=True, mimic=True, sync="flag",
        ldsmin=0, stamps=False, order="KQV", latebar=False, touch=None, prio=None, stouch="", vtouch=False, rot=None, midbar=False, storebar=0, thr=None, st2=None, st2w=8, sblo=0, sleep=True, par=None, kbar=False, cpf=None, hlp=None, tailpol=""):
    NWG = 4096 // W
    FL = (W+1)*8192
    LDS = FL + (8*(W+1) if sync == "flag" else 0)
    LDS = max(LDS, ldsmin)
    L = []; e = L.append
    e(HEADER.rstrip())
    e(f"; @launch grid=({NWG},1,1) block=({64*W},1,1) lds={LDS}")
    e('.amdgcn_target "amdgcn-amd-amdhsa--gfx950"')
    e(".text"); e(f".globl {NAME}_kernel"); e(".p2align 8"); e(f".type {NAME}_kernel,@function"); e(f"{NAME}_kernel:")
    SQ, SK, SV, SO = 16, 20, 24, 28
    S_HALO, S_CUR = 32, 33
    S_LDS = 34
    S_F = 35
    S_WG = 15
    S_MASK = 40; S_PLO, S_PHI = 48, 49; S_SCALE, S_LOG2E = 50, 51; S_CINIT = 52; S_HI16 = 53
    S_M5, S_MA, S_M3, S_MC = 54, 56, 58, 60
    V_QK, V_VO = 1, 2
    V_M01, V_M23 = 3, 4
    V_F = 5
    V_T = 6; V_A, V_B = 10, 11; V_P = 12; V_SP, V_SC = 16, 20; V_CI = 24
    V_KA = 28; V_GK = 32; V_VA = 36; V_FO, V_FP, V_ONE = 37, 38, 39; V_GV = 40; V_Z = 42
    VQ = 44; VKP = 60; VKC = 76; VVP = 92; VVC = 108
    VTMP = VVP
    VP = VKP
    VACC = VVP
    nvgpr = 124
    def rng(b, n): return f"v[{b}:{b+n-1}]"

    e("    ; STAMP 0")
    e(f"    s_load_dwordx2 s[{SK}:{SK+1}], s[0:1], 8")
    e(f"    s_load_dwordx2 s[{SQ}:{SQ+1}], s[0:1], 0")
    e(f"    s_load_dwordx2 s[{SV}:{SV+1}], s[0:1], 16")
    e(f"    s_load_dwordx2 s[{SO}:{SO+1}], s[0:1], 32")
    e(f"    s_cmp_ge_u32 s2, {NWG}")
    e(f"    s_cbranch_scc1 L_exit")
    e(f"    v_lshrrev_b32 v1, 6, v0")
    e(f"    v_and_b32 v0, 63, v0")
    if cpf is not None:
        e(f"    v_readfirstlane_b32 s62, v1")
        e(f"    s_getpc_b64 s[36:37]")
        e("L_pc:")
        e(f"    s_sub_u32 s36, s36, L_pc-{NAME}_kernel")
        e(f"    s_subb_u32 s37, s37, 0")
        e(f"    s_mov_b32 s38, L_codeend-{NAME}_kernel")
        e(f"    s_mov_b32 s39, 0x00020000")
        e(f"    v_lshlrev_b32 v41, 6, v0")
        e(f"    s_cmp_lg_u32 s62, {cpf}")
        e(f"    s_cbranch_scc1 L_nocpf")
        e(f"    buffer_load_dword v{V_F}, v41, s[36:39], 0 offen")
        e("L_nocpf:")
    if hlp is not None:
        e(f"    v_readfirstlane_b32 s62, v1")
        if rot is None: e(f"    s_mov_b32 s11, 0")
    if par is not None:
        e(f"    s_and_b32 s9, s2, 1")
        if par == 0: e(f"    s_xor_b32 s9, s9, 1")
    if storebar:
        e(f"    v_readfirstlane_b32 s10, v1")
    if rot is not None:
        e(f"    s_lshr_b32 s11, s2, {rot[0]}")
        e(f"    s_mul_i32 s11, s11, {rot[1]}")
        if len(rot) > 2 and rot[2]:
            e(f"    s_and_b32 s8, s2, 7")
            e(f"    s_mul_i32 s8, s8, {rot[2]}")
            e(f"    s_add_u32 s11, s11, s8")
        if len(rot) > 4 and rot[4]:
            e(f"    s_lshr_b32 s8, s2, 7")
            e(f"    s_mul_i32 s8, s8, {rot[4]}")
            e(f"    s_add_u32 s11, s11, s8")
        if len(rot) > 3 and rot[3] != 1:
            e(f"    v_mul_u32_u24 v1, {rot[3]}, v1")
        e(f"    v_add_u32 v1, s11, v1")
        e(f"    v_and_b32 v1, {W-1}, v1")
        e(f"    s_nop 0")
    e(f"    v_readfirstlane_b32 s3, v1")
    if sync == "flag":
        e(f"    v_lshlrev_b32 v{V_FP}, 3, v1")
        e(f"    v_add_u32 v{V_FO}, {FL+8}, v{V_FP}")
        e(f"    v_mov_b32 v{V_Z}, 0")
        e(f"    v_mov_b32 v{V_Z+1}, 0")
        e(f"    s_mov_b64 exec, 1")
        e(f"    ds_write_b64 v{V_FO}, {rng(V_Z,2)}")
        e(f"    s_mov_b64 exec, -1")
        e(f"    v_max_u32 v{V_FP}, 8, v{V_FP}")
        e(f"    v_add_u32 v{V_FP}, {FL}, v{V_FP}")
        e(f"    v_mov_b32 v{V_ONE}, 1")
    if xcd:
        e(f"    s_and_b32 s12, s2, 7")
        e(f"    s_lshr_b32 s13, s2, 3")
        e(f"    s_mul_i32 s12, s12, {NWG//8}")
        e(f"    s_add_u32 s12, s12, s13")
    else:
        e(f"    s_mov_b32 s12, s2")
    for s in (SQ, SK, SV, SO):
        e(f"    s_mov_b32 s{s+2}, 0x1000000")
        e(f"    s_mov_b32 s{s+3}, 0x00020000")
    e(f"    v_lshrrev_b32 v4, 4, v0")
    e(f"    v_and_b32 v3, 15, v0")
    e(f"    s_mul_i32 s12, s12, {W}")
    e(f"    s_lshl_b32 s{S_WG}, s12, 12")
    if vtouch:
        e(f"    s_mov_b32 s38, 0x1000000")
        e(f"    s_mov_b32 s39, 0x00020000")
    e(f"    s_add_u32 s12, s12, s3")
    e(f"    s_mov_b32 s14, s12")
    e(f"    s_lshl_b32 s{S_CUR}, s12, 12")
    e(f"    s_sub_u32 s{S_HALO}, s{S_CUR}, 0x1000")
    e(f"    s_and_b32 s13, s12, 127")
    e(f"    s_cselect_b32 s{S_HALO}, s{S_HALO}, 0x1000000")
    e(f"    s_cselect_b32 s{S_CINIT}, 0, 0x{f32bits(-1e30):08x}")
    e(f"    s_lshl_b32 s{S_LDS}, s3, 13")
    e(f"    v_lshlrev_b32 v6, 2, v4")
    e(f"    v_xor_b32 v6, v6, v3")
    e(f"    v_lshlrev_b32 v6, 4, v6")
    e(f"    v_lshl_add_u32 v{V_GK}, v4, 8, v6")
    for j in range(1, 4):
        e(f"    v_xor_b32 v{V_GK+j}, {j<<4}, v{V_GK}")
    e(f"    v_lshlrev_b32 v{V_GV}, 4, v0")
    e(f"    v_bfe_u32 v6, v0, 2, 2")
    e(f"    v_lshlrev_b32 v6, 10, v6")
    e(f"    v_and_b32 v7, 3, v0")
    e(f"    v_lshl_add_u32 v6, v4, 6, v6")
    e(f"    v_lshl_add_u32 v{V_QK}, v7, 4, v6")
    e(f"    s_add_u32 s4, s{S_LDS}, 8192")
    e(f"    s_add_u32 s5, s{S_LDS}, 12288")
    e(f"    s_waitcnt lgkmcnt(0)")
    if sync == "flag" and not latebar and not midbar:
        e(f"    s_barrier")
    e("    ; STAMP 1")
    for i, t in enumerate(stouch):
        sb = {"Q": SQ, "K": SK, "V": SV, "O": SO}[t]
        e(f"    s_load_dword s{6+i}, s[{sb}:{sb+1}], s{S_WG}")
    if vtouch:
        e(f"    s_bitcmp1_b32 s2, 3")
        e(f"    s_cselect_b64 s[36:37], s[{SQ}:{SQ+1}], s[{SK}:{SK+1}]")
        e(f"    s_cselect_b64 s[6:7], s[{SV}:{SV+1}], s[{SO}:{SO+1}]")
        e(f"    s_bitcmp1_b32 s2, 4")
        e(f"    s_cselect_b64 s[36:37], s[36:37], s[6:7]")
        e(f"    buffer_load_dword v{V_F}, off, s[36:39], s{S_WG}")
    e(f"    s_cmp_lg_u32 s3, 0")
    e(f"    s_cbranch_scc1 L_nohalo")
    e(f"    s_mov_b32 m0, 0")
    e(f"    s_nop 0")
    for j in range(4):
        e(f"    buffer_load_dwordx4 v{V_GK+j}, s[{SK}:{SK+3}], s{S_HALO} offen offset:{1024*j} {fh} lds")
    e(f"    s_mov_b32 m0, 4096")
    e(f"    s_nop 0")
    for j in range(4):
        e(f"    buffer_load_dwordx4 v{V_GV}, s[{SV}:{SV+3}], s{S_HALO} offen offset:{1024*j} {fh} lds")
    if touch is not None:
        e(f"    s_mov_b64 exec, 1")
        e(f"    buffer_load_dword v{V_F}, v{V_GV}, s[{SO}:{SO+3}], s{S_CUR} offen {touch}")
        e(f"    s_mov_b64 exec, -1")
    e("L_nohalo:")
    def issue(fk_, fv_, fq=fq):
        for o in order:
            if o == "K":
                e(f"    s_mov_b32 m0, s4")
                e(f"    s_nop 0")
                for j in range(4):
                    e(f"    buffer_load_dwordx4 v{V_GK+j}, s[{SK}:{SK+3}], s{S_CUR} offen offset:{1024*j} {fk_} lds")
                    if midbar and j == midbar-1:
                        if par is not None:
                            lab = f"L_mb{len(L)}"
                            e(f"    s_cmp_eq_u32 s9, 0"); e(f"    s_cbranch_scc1 {lab}"); e(f"    s_barrier"); e(f"{lab}:")
                        else: e(f"    s_barrier")
            elif o == "Q":
                for j in range(4):
                    e(f"    buffer_load_dwordx4 {rng(VQ+4*j,4)}, v{V_QK}, s[{SQ}:{SQ+3}], s{S_CUR} offen offset:{256*j} {fq}")
            else:
                e(f"    s_mov_b32 m0, s5")
                e(f"    s_nop 0")
                for j in range(4):
                    e(f"    buffer_load_dwordx4 v{V_GV}, s[{SV}:{SV+3}], s{S_CUR} offen offset:{1024*j} {fv_} lds")
    if hlp is not None and tailpol is not None:
        e(f"    s_cmp_lt_u32 s62, {W-hlp[0]}")
        e(f"    s_cbranch_scc1 L_nottail")
        issue(tailpol, tailpol, tailpol)
        e(f"    s_branch L_issued")
        e("L_nottail:")
    if flast is not None:
        e(f"    s_cmp_eq_u32 s3, {W-1}")
        e(f"    s_cbranch_scc1 L_last")
        issue(fk, fv)
        e(f"    s_branch L_issued")
        e("L_last:")
        issue(flast, flast)
        e("L_issued:")
    else:
        issue(fk, fv)
    e("    ; STAMP 2")
    e(f"    v_lshlrev_b32 v2, 10, v4")
    e(f"    v_lshl_add_u32 v{V_VO}, v3, 4, v2")
    e(f"    v_add_u32 v{V_VA}, s{S_LDS}, v{V_VO}")
    e(f"    v_and_b32 v6, 3, v3")
    e(f"    v_xor_b32 v6, v6, v4")
    e(f"    v_lshrrev_b32 v7, 2, v3")
    e(f"    v_lshl_add_u32 v6, v6, 2, v7")
    e(f"    v_lshlrev_b32 v6, 4, v6")
    e(f"    v_lshl_add_u32 v6, v3, 8, v6")
    e(f"    v_add_u32 v{V_KA}, s{S_LDS}, v6")
    for j in range(1, 4):
        e(f"    v_xor_b32 v{V_KA+j}, {j<<4}, v{V_KA}")
    for r in range(4):
        m = 0
        for l in range(64):
            if 4*(l >> 4) + r <= (l & 15): m |= 1 << l
        e(f"    s_mov_b32 s{S_MASK+2*r}, 0x{m & 0xffffffff:08x}")
        e(f"    s_mov_b32 s{S_MASK+2*r+1}, 0x{m >> 32:08x}")
    for s, c in ((S_M5, 0x55555555), (S_MA, 0xaaaaaaaa), (S_M3, 0x33333333), (S_MC, 0xcccccccc)):
        e(f"    s_mov_b32 s{s}, 0x{c:08x}")
        e(f"    s_mov_b32 s{s+1}, s{s}")
    e(f"    s_mov_b32 s{S_PLO}, 0x05040100")
    e(f"    s_mov_b32 s{S_PHI}, 0x07060302")
    e(f"    s_mov_b32 s{S_SCALE}, 0x{f32bits(128**-0.5):08x}")
    e(f"    s_mov_b32 s{S_LOG2E}, 0x{f32bits(1.4426950408889634 * (1.0 if mimic else 128**-0.5)):08x}")
    e(f"    s_mov_b32 s{S_HI16}, 0xffff0000")
    e(f"    v_mov_b32 v{V_A}, 0xffff")
    e(f"    v_mov_b32 v{V_B}, 0xffff0000")
    e(f"    v_cndmask_b32 v{V_T}, 0, v{V_A}, s[{S_MASK}:{S_MASK+1}]")
    e(f"    v_cndmask_b32 v{V_T+1}, 0, v{V_B}, s[{S_MASK+2}:{S_MASK+3}]")
    e(f"    v_cndmask_b32 v{V_T+2}, 0, v{V_A}, s[{S_MASK+4}:{S_MASK+5}]")
    e(f"    v_cndmask_b32 v{V_T+3}, 0, v{V_B}, s[{S_MASK+6}:{S_MASK+7}]")
    e(f"    v_or_b32 v{V_M01}, v{V_T}, v{V_T+1}")
    e(f"    v_or_b32 v{V_M23}, v{V_T+2}, v{V_T+3}")
    for r in range(4):
        e(f"    v_mov_b32 v{V_CI+r}, s{S_CINIT}")
    if hlp is not None:
        P, NP, mm = hlp
        G = P//2
        e(f"    s_mul_i32 s6, s62, 11"); e(f"    s_lshr_b32 s6, s6, 5")
        e(f"    s_mul_i32 s7, s6, 3"); e(f"    s_sub_u32 s7, s62, s7")
        e(f"    s_cmp_eq_u32 s7, 1"); e(f"    s_cselect_b64 s[36:37], s[{SK}:{SK+1}], s[{SQ}:{SQ+1}]")
        e(f"    s_cmp_eq_u32 s7, 2"); e(f"    s_cselect_b64 s[36:37], s[{SV}:{SV+1}], s[36:37]")
        e(f"    s_mov_b32 s38, 0x1000000"); e(f"    s_mov_b32 s39, 0x00020000")
        e(f"    s_lshr_b32 s7, s6, {G.bit_length()-1}")
        e(f"    s_and_b32 s8, s6, {G-1}")
        e(f"    s_lshl_b32 s8, s8, 1"); e(f"    s_add_u32 s8, s8, {W-P}")
        e(f"    v_lshrrev_b32 v41, 5, v0"); e(f"    v_add_u32 v41, s8, v41")
        if rot is not None and len(rot) > 3 and rot[3] != 1: e(f"    v_mul_u32_u24 v41, {rot[3]}, v41")
        e(f"    v_add_u32 v41, s11, v41"); e(f"    v_and_b32 v41, 15, v41"); e(f"    v_lshlrev_b32 v41, 12, v41")
        e(f"    v_and_b32 v42, 31, v0"); e(f"    v_lshl_add_u32 v41, v42, 7, v41")
        e(f"    s_lshr_b32 s8, s2, 3"); e(f"    s_add_u32 s8, s8, s7")
        if mm == "odd":
            e(f"    s_and_b32 s8, s8, 3"); e(f"    s_lshl_b32 s8, s8, 1"); e(f"    s_or_b32 s8, s8, 1")
        elif mm == "one":
            e(f"    s_mov_b32 s8, 1")
        else:
            e(f"    s_and_b32 s8, s8, 7"); e(f"    s_max_u32 s8, s8, 1")
        e(f"    s_lshl_b32 s8, s8, 21"); e(f"    s_xor_b32 s8, s8, s{S_WG}")
        e(f"    s_cmp_lt_u32 s7, {NP}"); e(f"    s_cselect_b32 s8, s8, 0x1000000")
        e(f"    s_cmp_lt_u32 s62, 15"); e(f"    s_cselect_b32 s8, s8, 0x1000000")
    if sync == "flag" and latebar:
        e(f"    s_barrier")
    if hlp is not None:
        e(f"    buffer_load_dword v43, v41, s[36:39], s8 offen")
    if storebar and storebar < W:
        if par is not None:
            e(f"    s_cmp_eq_u32 s9, 0"); e(f"    s_cselect_b32 s10, 31, s10")
        e(f"    s_cmp_lt_u32 s10, {storebar}")
        e(f"    s_cbranch_scc1 L_nob1")
        e(f"    s_barrier")
        e("L_nob1:")
    pos = {o: i for i, o in enumerate(order)}
    def vm(o): return 4*(2-pos[o]) + (1 if hlp is not None else 0)
    DP1 = "quad_perm:[1,0,3,2] row_mask:0xf bank_mask:0xf"
    DP2 = "quad_perm:[2,3,0,1] row_mask:0xf bank_mask:0xf"
    def transpose(R):
        T = VTMP
        e(f"    s_mov_b64 vcc, s[{S_M5}:{S_M5+1}]")
        for j0 in (0, 2):
            for x in range(4): e(f"    v_cndmask_b32_dpp v{T+4*j0+x}, v{R+4*(j0+1)+x}, v{R+4*j0+x}, vcc {DP1}")
        e(f"    s_mov_b64 vcc, s[{S_MA}:{S_MA+1}]")
        for j0 in (0, 2):
            for x in range(4): e(f"    v_cndmask_b32_dpp v{T+4*(j0+1)+x}, v{R+4*j0+x}, v{R+4*(j0+1)+x}, vcc {DP1}")
        e(f"    s_mov_b64 vcc, s[{S_M3}:{S_M3+1}]")
        for j0 in (0, 1):
            for x in range(4): e(f"    v_cndmask_b32_dpp v{R+4*j0+x}, v{T+4*(j0+2)+x}, v{T+4*j0+x}, vcc {DP2}")
        e(f"    s_mov_b64 vcc, s[{S_MC}:{S_MC+1}]")
        for j0 in (0, 1):
            for x in range(4): e(f"    v_cndmask_b32_dpp v{R+4*(j0+2)+x}, v{T+4*j0+x}, v{T+4*(j0+2)+x}, vcc {DP2}")
    def rdKp():
        for j in range(4): e(f"    ds_read_b128 {rng(VKP+4*j,4)}, v{V_KA+j}")
    def rdKc():
        for j in range(4): e(f"    ds_read_b128 {rng(VKC+4*j,4)}, v{V_KA+j} offset:8192")
    def rdVp():
        for r in range(4): e(f"    ds_read_b128 {rng(VVP+4*r,4)}, v{V_VA} offset:{4096+256*r}")
    def rdVc():
        for r in range(4): e(f"    ds_read_b128 {rng(VVC+4*r,4)}, v{V_VA} offset:{12288+256*r}")
    def publish(off):
        e(f"    s_mov_b64 exec, 1")
        e(f"    ds_write_b32 v{V_FO}, v{V_ONE} offset:{off}")
        e(f"    s_mov_b64 exec, -1")
    assert order in ("KQV", "QKV")
    if order == "QKV":
        e(f"    s_waitcnt vmcnt({vm('Q')})")
        transpose(VQ)
    e(f"    s_waitcnt vmcnt({vm('K')})")
    e("    ; STAMP 3")
    if kbar:
        e(f"    s_cmp_eq_u32 s9, 1"); e(f"    s_cbranch_scc1 L_nokb"); e(f"    s_barrier"); e("L_nokb:")
    if sync == "flag":
        publish(0)
        e(f"    ds_read_b32 v{V_F}, v{V_FP}")
        rdKp(); rdKc()
    else:
        rdKc()
        if order == "QKV":
            e(f"    s_barrier"); rdKp()
    if order == "KQV":
        e(f"    s_waitcnt vmcnt({vm('Q')})")
        transpose(VQ)
        if sync != "flag":
            e(f"    s_barrier"); rdKp()
    e(f"    s_waitcnt lgkmcnt(0)")
    if sync == "flag":
        e(f"    v_readfirstlane_b32 s{S_F}, v{V_F}")
        e(f"    s_cmp_eq_u32 s{S_F}, 1")
        e(f"    s_cbranch_scc0 L_kspin")
        e("L_kok:")
    for j in range(4):
        csc = "0" if j == 0 else rng(V_SC, 4)
        csp = rng(V_CI, 4) if j == 0 else rng(V_SP, 4)
        e(f"    v_mfma_f32_16x16x32_bf16 {rng(V_SC,4)}, {rng(VKC+4*j,4)}, {rng(VQ+4*j,4)}, {csc}")
        e(f"    v_mfma_f32_16x16x32_bf16 {rng(V_SP,4)}, {rng(VKP+4*j,4)}, {rng(VQ+4*j,4)}, {csp}")
    e(f"    s_nop 7")
    softmax(e, V_T, V_A, V_B, V_SP, V_SC, V_P, V_M01, V_M23, S_MASK, S_HI16, S_SCALE, S_LOG2E, mimic)
    e("    ; STAMP 4")
    e(f"    s_waitcnt vmcnt({vm('V')})")
    if sync == "flag":
        publish(4)
        rdVc()
        e(f"    ds_read_b32 v{V_F}, v{V_FP} offset:4")
        rdVp()
        e(f"    s_waitcnt lgkmcnt(5)")
    else:
        rdVc()
        e(f"    s_barrier")
        rdVp()
        e(f"    s_waitcnt lgkmcnt(4)")
    def perms(src, half):
        for m in range(4):
            for s, sel in ((0, S_PLO), (1, S_PHI)):
                tt = 2*m + s
                e(f"    v_perm_b32 v{VP+4*tt+half}, v{src+4+m}, v{src+m}, s{sel}")
                e(f"    v_perm_b32 v{VP+4*tt+half+1}, v{src+12+m}, v{src+8+m}, s{sel}")
    perms(VVC, 2)
    e(f"    s_waitcnt lgkmcnt(0)")
    if sync == "flag":
        e(f"    v_readfirstlane_b32 s{S_F}, v{V_F}")
        e(f"    s_cmp_eq_u32 s{S_F}, 1")
        e(f"    s_cbranch_scc0 L_vspin")
        e("L_vok:")
    perms(VVP, 0)
    e("    ; STAMP 5")
    e(f"    s_nop 1")
    for tt in range(8):
        e(f"    v_mfma_f32_16x16x32_bf16 {rng(VACC+4*tt,4)}, {rng(V_P,4)}, {rng(VP+4*tt,4)}, 0")
    e(f"    s_nop 7")
    vout = VQ
    if storebar:
        for r in range(4):
            for m in range(4):
                e(f"    v_cvt_pk_bf16_f32 v{vout+4*r+m}, v{VACC+4*(2*m)+r}, v{VACC+4*(2*m+1)+r}")
        if storebar < W:
            e(f"    s_cmp_ge_u32 s10, {storebar}")
            e(f"    s_cbranch_scc1 L_nob2")
        if sblo:
            e(f"    s_cmp_lt_u32 s10, {sblo}")
            e(f"    s_cbranch_scc1 L_nob2")
        e(f"    s_barrier")
        e("L_nob2:")
    def stores(pol):
        for r in range(4):
            for m in range(4):
                if not storebar: e(f"    v_cvt_pk_bf16_f32 v{vout+4*r+m}, v{VACC+4*(2*m)+r}, v{VACC+4*(2*m+1)+r}")
            if thr is not None and r > thr: e(f"    s_waitcnt vmcnt({thr})")
            e(f"    buffer_store_dwordx4 {rng(vout+4*r,4)}, v{V_VO}, s[{SO}:{SO+3}], s{S_CUR} offen offset:{256*r} {pol}".rstrip())
    if st2 is not None:
        e(f"    s_cmp_lt_u32 s3, {st2w}")
        e(f"    s_cbranch_scc1 L_st2")
        stores(st)
        e(f"    s_branch L_stdone")
        e("L_st2:")
        stores(st2)
        e("L_stdone:")
    else:
        stores(st)
    if hlp is not None: e(f"    s_waitcnt vmcnt(4)")
    e("    ; STAMP 6")
    e("L_end:")
    e("L_exit:")
    e("    s_endpgm")
    if sync == "flag":
        for nm, off, rd in (("k", 0, rdKp), ("v", 4, rdVp)):
            e(f"L_{nm}spin:")
            if sleep: e(f"    s_sleep 1")
            e(f"    ds_read_b32 v{V_F}, v{V_FP} offset:{off}")
            e(f"    s_waitcnt lgkmcnt(0)")
            e(f"    v_readfirstlane_b32 s{S_F}, v{V_F}")
            e(f"    s_cmp_eq_u32 s{S_F}, 1")
            e(f"    s_cbranch_scc0 L_{nm}spin")
            rd()
            e(f"    s_waitcnt lgkmcnt(0)")
            e(f"    s_branch L_{nm}ok")
    e("L_codeend:")
    e('.section .rodata,"a"')
    e(".p2align 6")
    e(f".amdhsa_kernel {NAME}_kernel")
    e(f"  .amdhsa_next_free_vgpr {nvgpr}")
    e(f"  .amdhsa_next_free_sgpr 64")
    e(f"  .amdhsa_accum_offset {(nvgpr+3)//4*4}")
    e(f"  .amdhsa_group_segment_fixed_size 0")
    e(f"  .amdhsa_kernarg_size 56")
    e(f"  .amdhsa_user_sgpr_count 2")
    e(f"  .amdhsa_user_sgpr_kernarg_segment_ptr 1")
    e(f"  .amdhsa_system_sgpr_workgroup_id_x 1")
    e(f"  .amdhsa_float_denorm_mode_32 3")
    e(f".end_amdhsa_kernel")
    s = "\n".join(L) + "\n"
    if stamps: s = stamp.add_stamps(s)
    else: s = "\n".join(l for l in s.split("\n") if "; STAMP" not in l)
    return s
```

```python
import sys; sys.path.insert(0,'gen')
import gen3
B=dict(W=16,fh="",flast="",latebar=True,sleep=False,order="QKV",rot=(3,5))
V={}
V['r_5']=dict(B)
V['h_4_1_odd']=dict(B,hlp=(4,1,"odd"))
V['h_4_2_odd']=dict(B,hlp=(4,2,"odd"))
V['h_4_2_any']=dict(B,hlp=(4,2,"any"))
V['h_2_1_odd']=dict(B,hlp=(2,1,"odd"))
V['h_2_2_odd']=dict(B,hlp=(2,2,"odd"))
V['h_2_4_odd']=dict(B,hlp=(2,4,"odd"))
V['h_4_0']=dict(B,hlp=(4,0,"odd"))
V['h_2_0']=dict(B,hlp=(2,0,"odd"))
V['h_4_1_nt']=dict(B,hlp=(4,1,"odd"),tailpol=None)
V['h_4_1_one']=dict(B,hlp=(4,1,"one"))
for k,a in V.items():
    open(f'p/{k}.s','w').write(gen3.gen(**a))
print(" ".join(f"p/{k}.s" for k in V))
```

```python
import struct
import stamp

NAME = "standalone__sliding_local_chunked__prompt"
def f32bits(x): return struct.unpack("<I", struct.pack("<f", x))[0]

HEADER = """; Kernarg layout for this problem (56 bytes, ptrs only, base s[0:1]):
"""

def softmax(e, T, V_A, V_B, V_SP, V_SC, V_P, V_M01, V_M23, S_MASK, S_HI16, S_SCALE, S_LOG2E, mimic):
    for r in range(4):
        e(f"    v_cndmask_b32 v{T+r}, v{V_SP+r}, v{V_SC+r}, s[{S_MASK+2*r}:{S_MASK+2*r+1}]")
    if mimic:
        e(f"    v_cvt_pk_bf16_f32 v{V_A}, v{T}, v{T+1}")
        e(f"    v_cvt_pk_bf16_f32 v{V_B}, v{T+2}, v{T+3}")
        e(f"    v_lshlrev_b32 v{T}, 16, v{V_A}")
        e(f"    v_and_b32 v{T+1}, s{S_HI16}, v{V_A}")
        e(f"    v_lshlrev_b32 v{T+2}, 16, v{V_B}")
        e(f"    v_and_b32 v{T+3}, s{S_HI16}, v{V_B}")
        for r in range(4):
            e(f"    v_mul_f32 v{T+r}, s{S_SCALE}, v{T+r}")
        e(f"    v_cvt_pk_bf16_f32 v{V_A}, v{T}, v{T+1}")
        e(f"    v_cvt_pk_bf16_f32 v{V_B}, v{T+2}, v{T+3}")
        e(f"    v_lshlrev_b32 v{T}, 16, v{V_A}")
        e(f"    v_and_b32 v{T+1}, s{S_HI16}, v{V_A}")
        e(f"    v_lshlrev_b32 v{T+2}, 16, v{V_B}")
        e(f"    v_and_b32 v{T+3}, s{S_HI16}, v{V_B}")
    e(f"    v_max3_f32 v{V_A}, v{T}, v{T+1}, v{T+2}")
    e(f"    v_max_f32 v{V_A}, v{V_A}, v{T+3}")
    e(f"    v_mov_b32 v{V_B}, v{V_A}")
    e(f"    s_nop 1")
    e(f"    v_permlane16_swap_b32 v{V_A}, v{V_B}")
    e(f"    s_nop 1")
    e(f"    v_max_f32 v{V_A}, v{V_A}, v{V_B}")
    e(f"    v_mov_b32 v{V_B}, v{V_A}")
    e(f"    s_nop 1")
    e(f"    v_permlane32_swap_b32 v{V_A}, v{V_B}")
    e(f"    s_nop 1")
    e(f"    v_max_f32 v{V_A}, v{V_A}, v{V_B}")
    for r in range(4):
        e(f"    v_sub_f32 v{T+r}, v{T+r}, v{V_A}")
    for r in range(4):
        e(f"    v_mul_f32 v{T+r}, s{S_LOG2E}, v{T+r}")
    for r in range(4):
        e(f"    v_exp_f32 v{T+r}, v{T+r}")
    e(f"    s_nop 0")
    e(f"    v_add_f32 v{V_A}, v{T}, v{T+1}")
    e(f"    v_add_f32 v{V_B}, v{T+2}, v{T+3}")
    e(f"    v_add_f32 v{V_A}, v{V_A}, v{V_B}")
    e(f"    v_mov_b32 v{V_B}, v{V_A}")
    e(f"    s_nop 1")
    e(f"    v_permlane16_swap_b32 v{V_A}, v{V_B}")
    e(f"    s_nop 1")
    e(f"    v_add_f32 v{V_A}, v{V_A}, v{V_B}")
    e(f"    v_mov_b32 v{V_B}, v{V_A}")
    e(f"    s_nop 1")
    e(f"    v_permlane32_swap_b32 v{V_A}, v{V_B}")
    e(f"    s_nop 1")
    e(f"    v_add_f32 v{V_A}, v{V_A}, v{V_B}")
    e(f"    v_rcp_f32 v{V_A}, v{V_A}")
    e(f"    s_nop 0")
    for r in range(4):
        e(f"    v_mul_f32 v{T+r}, v{T+r}, v{V_A}")
    e(f"    v_cvt_pk_bf16_f32 v{V_A}, v{T}, v{T+1}")
    e(f"    v_cvt_pk_bf16_f32 v{V_B}, v{T+2}, v{T+3}")
    e(f"    v_and_b32 v{V_P+2}, v{V_M01}, v{V_A}")
    e(f"    v_and_b32 v{V_P+3}, v{V_M23}, v{V_B}")
    e(f"    v_xor_b32 v{V_P}, v{V_P+2}, v{V_A}")
    e(f"    v_xor_b32 v{V_P+1}, v{V_P+3}, v{V_B}")

def gen(W=16, fq="nt", fk="nt", fv="nt", fh="nt", flast=None, st="sc1", xcd=True, mimic=True, sync="flag",
        ldsmin=0, stamps=False, order="KQV", latebar=False, touch=None, prio=None, stouch="", vtouch=False, rot=None, midbar=False, storebar=0, thr=None, st2=None, st2w=8, sblo=0, sleep=True, par=None, kbar=False, cpf=None, hlp=None, tailpol="", gate=None, wb=None, st2phys=False, barafter="", latepos="I", halov=False, inner="", bub=None, bublate=True):
    assert 'I' in latepos or midbar or barafter
    assert rot is None or storebar in (0, W), 'storebar<W with rot deadlocks'
    NWG = 4096 // W
    FL = (W+1)*8192
    LDS = FL + (8*(W+1) if sync == "flag" else 0)
    LDS = max(LDS, ldsmin)
    L = []; e = L.append
    e(HEADER.rstrip())
    e(f"; @launch grid=({NWG},1,1) block=({64*W},1,1) lds={LDS}")
    e('.amdgcn_target "amdgcn-amd-amdhsa--gfx950"')
    e(".text"); e(f".globl {NAME}_kernel"); e(".p2align 8"); e(f".type {NAME}_kernel,@function"); e(f"{NAME}_kernel:")
    SQ, SK, SV, SO = 16, 20, 24, 28
    S_HALO, S_CUR = 32, 33
    S_LDS = 34
    S_F = 35
    S_WG = 15
    S_MASK = 40; S_PLO, S_PHI = 48, 49; S_SCALE, S_LOG2E = 50, 51; S_CINIT = 52; S_HI16 = 53
    S_M5, S_MA, S_M3, S_MC = 54, 56, 58, 60
    V_QK, V_VO = 1, 2
    V_M01, V_M23 = 3, 4
    V_F = 5
    V_T = 6; V_A, V_B = 10, 11; V_P = 12; V_SP, V_SC = 16, 20; V_CI = 24
    V_KA = 28; V_GK = 32; V_VA = 36; V_FO, V_FP, V_ONE = 37, 38, 39; V_GV = 40; V_Z = 42
    VQ = 44; VKP = 60; VKC = 76; VVP = 92; VVC = 108
    VTMP = VVP
    VP = VKP
    VACC = VVP
    nvgpr = 124
    def rng(b, n): return f"v[{b}:{b+n-1}]"
    def dowb(p):
        if wb and wb['pos'] == p:
            e(f"    s_cmp_lg_u32 s9, {wb.get('wg',0)*16 + wb['w']}")
            e(f"    s_cbranch_scc1 L_nowb")
            e(f"    buffer_wbl2 sc1")
            e("L_nowb:")

    e("    ; STAMP 0")
    e(f"    s_load_dwordx2 s[{SK}:{SK+1}], s[0:1], 8")
    e(f"    s_load_dwordx2 s[{SQ}:{SQ+1}], s[0:1], 0")
    e(f"    s_load_dwordx2 s[{SV}:{SV+1}], s[0:1], 16")
    e(f"    s_load_dwordx2 s[{SO}:{SO+1}], s[0:1], 32")
    if gate: e(f"    s_load_dwordx2 s[36:37], s[0:1], 40")
    e(f"    s_cmp_ge_u32 s2, {NWG}")
    e(f"    s_cbranch_scc1 L_exit")
    e(f"    v_lshrrev_b32 v1, 6, v0")
    e(f"    v_and_b32 v0, 63, v0")
    if cpf is not None:
        e(f"    v_readfirstlane_b32 s62, v1")
        e(f"    s_getpc_b64 s[36:37]")
        e("L_pc:")
        e(f"    s_sub_u32 s36, s36, L_pc-{NAME}_kernel")
        e(f"    s_subb_u32 s37, s37, 0")
        e(f"    s_mov_b32 s38, L_codeend-{NAME}_kernel")
        e(f"    s_mov_b32 s39, 0x00020000")
        e(f"    v_lshlrev_b32 v41, 6, v0")
        e(f"    s_cmp_lg_u32 s62, {cpf}")
        e(f"    s_cbranch_scc1 L_nocpf")
        e(f"    buffer_load_dword v{V_F}, v41, s[36:39], 0 offen")
        e("L_nocpf:")
    if hlp is not None:
        e(f"    v_readfirstlane_b32 s62, v1")
        if rot is None: e(f"    s_mov_b32 s11, 0")
    if par is not None:
        e(f"    s_and_b32 s9, s2, 1")
        if par == 0: e(f"    s_xor_b32 s9, s9, 1")
    if storebar or gate or wb or st2phys or bub:
        e(f"    v_readfirstlane_b32 s10, v1")
    if rot is not None:
        e(f"    s_lshr_b32 s11, s2, {rot[0]}")
        e(f"    s_mul_i32 s11, s11, {rot[1]}")
        if len(rot) > 2 and rot[2]:
            e(f"    s_and_b32 s8, s2, 7")
            e(f"    s_mul_i32 s8, s8, {rot[2]}")
            e(f"    s_add_u32 s11, s11, s8")
        if len(rot) > 4 and rot[4]:
            e(f"    s_lshr_b32 s8, s2, 7")
            e(f"    s_mul_i32 s8, s8, {rot[4]}")
            e(f"    s_add_u32 s11, s11, s8")
        if len(rot) > 3 and rot[3] != 1:
            e(f"    v_mul_u32_u24 v1, {rot[3]}, v1")
        e(f"    v_add_u32 v1, s11, v1")
        e(f"    v_and_b32 v1, {W-1}, v1")
        e(f"    s_nop 0")
    e(f"    v_readfirstlane_b32 s3, v1")
    if sync == "flag":
        e(f"    v_lshlrev_b32 v{V_FP}, 3, v1")
        e(f"    v_add_u32 v{V_FO}, {FL+8}, v{V_FP}")
        e(f"    v_mov_b32 v{V_Z}, 0")
        e(f"    v_mov_b32 v{V_Z+1}, 0")
        e(f"    s_mov_b64 exec, 1")
        e(f"    ds_write_b64 v{V_FO}, {rng(V_Z,2)}")
        e(f"    s_mov_b64 exec, -1")
        e(f"    v_max_u32 v{V_FP}, 8, v{V_FP}")
        e(f"    v_add_u32 v{V_FP}, {FL}, v{V_FP}")
        e(f"    v_mov_b32 v{V_ONE}, 1")
    if xcd:
        e(f"    s_and_b32 s12, s2, 7")
        e(f"    s_lshr_b32 s13, s2, 3")
        e(f"    s_mul_i32 s12, s12, {NWG//8}")
        e(f"    s_add_u32 s12, s12, s13")
    else:
        e(f"    s_mov_b32 s12, s2")
    for s in (SQ, SK, SV, SO):
        e(f"    s_mov_b32 s{s+2}, 0x1000000")
        e(f"    s_mov_b32 s{s+3}, 0x00020000")
    if gate:
        e(f"    s_mov_b32 s38, {8*gate.get('stride',32)}")
        e(f"    s_mov_b32 s39, 0x00020000")
        e(f"    s_and_b32 s62, s2, 7")
        e(f"    s_mul_i32 s62, s62, {gate.get('stride',32)}")
        e(f"    s_add_u32 s62, s62, s13")
    if bub:
        bubreg = {}
        for (t, nt), reg in zip(bub.items(), (9, 8, 63)):
            bubreg[t] = f"s{reg}"
            if len(nt) == 2 and nt[0] == nt[1]:
                bubreg[t] = str(nt[0]); continue
            if len(nt) == 2:
                e(f"    s_getreg_b32 s{reg}, hwreg(HW_REG_XCC_ID, 0, 1)")
                e(f"    s_cmp_eq_u32 s{reg}, 0")
                e(f"    s_cselect_b32 s{reg}, {nt[0]}, {nt[1]}")
                continue
            lo = sum(n << (8*x) for x, n in enumerate(nt[:4])); hi = sum(n << (8*x) for x, n in enumerate(nt[4:]))
            e(f"    s_getreg_b32 s{reg}, hwreg(HW_REG_XCC_ID, 0, 3)")
            e(f"    s_mov_b32 s6, 0x{lo:08x}"); e(f"    s_mov_b32 s7, 0x{hi:08x}")
            e(f"    s_lshl_b32 s{reg}, s{reg}, 3")
            e(f"    s_lshr_b64 s[6:7], s[6:7], s{reg}")
            e(f"    s_and_b32 s{reg}, s6, 0xff")
    if wb:
        e(f"    s_lshr_b32 s9, s2, 3")
        e(f"    s_and_b32 s9, s9, {wb.get('mask',31)}")
        e(f"    s_lshl_b32 s9, s9, 4")
        e(f"    s_add_u32 s9, s9, s10")
    e(f"    v_lshrrev_b32 v4, 4, v0")
    e(f"    v_and_b32 v3, 15, v0")
    e(f"    s_mul_i32 s12, s12, {W}")
    e(f"    s_lshl_b32 s{S_WG}, s12, 12")
    if vtouch:
        e(f"    s_mov_b32 s38, 0x1000000")
        e(f"    s_mov_b32 s39, 0x00020000")
    e(f"    s_add_u32 s12, s12, s3")
    e(f"    s_mov_b32 s14, s12")
    e(f"    s_lshl_b32 s{S_CUR}, s12, 12")
    e(f"    s_sub_u32 s{S_HALO}, s{S_CUR}, 0x1000")
    e(f"    s_and_b32 s13, s12, 127")
    e(f"    s_cselect_b32 s{S_HALO}, s{S_HALO}, 0x1000000")
    e(f"    s_cselect_b32 s{S_CINIT}, 0, 0x{f32bits(-1e30):08x}")
    e(f"    s_lshl_b32 s{S_LDS}, s3, 13")
    e(f"    v_lshlrev_b32 v6, 2, v4")
    e(f"    v_xor_b32 v6, v6, v3")
    e(f"    v_lshlrev_b32 v6, 4, v6")
    e(f"    v_lshl_add_u32 v{V_GK}, v4, 8, v6")
    for j in range(1, 4):
        e(f"    v_xor_b32 v{V_GK+j}, {j<<4}, v{V_GK}")
    e(f"    v_lshlrev_b32 v{V_GV}, 4, v0")
    e(f"    v_bfe_u32 v6, v0, 2, 2")
    e(f"    v_lshlrev_b32 v6, 10, v6")
    e(f"    v_and_b32 v7, 3, v0")
    e(f"    v_lshl_add_u32 v6, v4, 6, v6")
    e(f"    v_lshl_add_u32 v{V_QK}, v7, 4, v6")
    e(f"    s_add_u32 s4, s{S_LDS}, 8192")
    e(f"    s_add_u32 s5, s{S_LDS}, 12288")
    e(f"    s_waitcnt lgkmcnt(0)")
    if sync == "flag" and not latebar and not midbar and not barafter:
        e(f"    s_barrier")
    e("    ; STAMP 1")
    for i, t in enumerate(stouch):
        sb = {"Q": SQ, "K": SK, "V": SV, "O": SO}[t]
        e(f"    s_load_dword s{6+i}, s[{sb}:{sb+1}], s{S_WG}")
    if vtouch:
        e(f"    s_bitcmp1_b32 s2, 3")
        e(f"    s_cselect_b64 s[36:37], s[{SQ}:{SQ+1}], s[{SK}:{SK+1}]")
        e(f"    s_cselect_b64 s[6:7], s[{SV}:{SV+1}], s[{SO}:{SO+1}]")
        e(f"    s_bitcmp1_b32 s2, 4")
        e(f"    s_cselect_b64 s[36:37], s[36:37], s[6:7]")
        e(f"    buffer_load_dword v{V_F}, off, s[36:39], s{S_WG}")
    e(f"    s_cmp_lg_u32 s3, 0")
    e(f"    s_cbranch_scc1 L_nohalo")
    e(f"    s_mov_b32 m0, 0")
    e(f"    s_nop 0")
    for j in range(4):
        e(f"    buffer_load_dwordx4 v{V_GK+j}, s[{SK}:{SK+3}], s{S_HALO} offen offset:{1024*j} {fh} lds")
    if not halov:
        e(f"    s_mov_b32 m0, 4096")
        e(f"    s_nop 0")
        for j in range(4):
            e(f"    buffer_load_dwordx4 v{V_GV}, s[{SV}:{SV+3}], s{S_HALO} offen offset:{1024*j} {fh} lds")
    if touch is not None:
        e(f"    s_mov_b64 exec, 1")
        e(f"    buffer_load_dword v{V_F}, v{V_GV}, s[{SO}:{SO+3}], s{S_CUR} offen {touch}")
        e(f"    s_mov_b64 exec, -1")
    e("L_nohalo:")
    def signal():
        lab = f"L_sg{len(L)}"
        e(f"    s_cmp_lg_u32 s10, {gate['w']}")
        e(f"    s_cbranch_scc1 {lab}")
        e(f"    s_mov_b64 exec, 1")
        e(f"    buffer_store_byte v{V_ONE}, off, s[36:39], s62 {gate.get('pol','')}".rstrip())
        e(f"    s_mov_b64 exec, -1")
        e(f"{lab}:")
    def issue(fk_, fv_, fq=fq):
        for oi, o in enumerate(order + "."):
            if gate and gate['pos'] == oi: signal()
            if oi and bub and order[oi-1] in bub and not (o == "." and bublate):
                lab = f"L_bb{len(L)}"
                e(f"    s_cmp_ge_u32 s10, {bubreg[order[oi-1]]}"); e(f"    s_cbranch_scc1 {lab}")
                e(f"    s_waitcnt vmcnt(0)")
                e(f"{lab}:")
            if oi and order[oi-1] in barafter: e(f"    s_barrier")
            if o == "V" and halov:
                lab = f"L_hv{len(L)}"
                e(f"    s_cmp_lg_u32 s3, 0"); e(f"    s_cbranch_scc1 {lab}")
                e(f"    s_mov_b32 m0, 4096"); e(f"    s_nop 0")
                for j in range(4):
                    e(f"    buffer_load_dwordx4 v{V_GV}, s[{SV}:{SV+3}], s{S_HALO} offen offset:{1024*j} {fh} lds")
                e(f"{lab}:")
            if o == ".": pass
            elif o == "K":
                e(f"    s_mov_b32 m0, s4")
                e(f"    s_nop 0")
                for j in range(4):
                    e(f"    buffer_load_dwordx4 v{V_GK+j}, s[{SK}:{SK+3}], s{S_CUR} offen offset:{1024*j} {fk_} lds")
                    if f"K{j}" in inner: e(f"    s_barrier")
                    if midbar and j == midbar-1:
                        if par is not None:
                            lab = f"L_mb{len(L)}"
                            e(f"    s_cmp_eq_u32 s9, 0"); e(f"    s_cbranch_scc1 {lab}"); e(f"    s_barrier"); e(f"{lab}:")
                        else: e(f"    s_barrier")
            elif o == "Q":
                for j in range(4):
                    e(f"    buffer_load_dwordx4 {rng(VQ+4*j,4)}, v{V_QK}, s[{SQ}:{SQ+3}], s{S_CUR} offen offset:{256*j} {fq}")
                    if f"Q{j}" in inner: e(f"    s_barrier")
            else:
                e(f"    s_mov_b32 m0, s5")
                e(f"    s_nop 0")
                for j in range(4):
                    e(f"    buffer_load_dwordx4 v{V_GV}, s[{SV}:{SV+3}], s{S_CUR} offen offset:{1024*j} {fv_} lds")
                    if f"V{j}" in inner: e(f"    s_barrier")
    if hlp is not None and tailpol is not None:
        e(f"    s_cmp_lt_u32 s62, {W-hlp[0]}")
        e(f"    s_cbranch_scc1 L_nottail")
        issue(tailpol, tailpol, tailpol)
        e(f"    s_branch L_issued")
        e("L_nottail:")
    if flast is not None:
        e(f"    s_cmp_eq_u32 s3, {W-1}")
        e(f"    s_cbranch_scc1 L_last")
        issue(fk, fv)
        e(f"    s_branch L_issued")
        e("L_last:")
        issue(flast, flast)
        e("L_issued:")
    else:
        issue(fk, fv)
    e("    ; STAMP 2")
    dowb('I')
    e(f"    v_lshlrev_b32 v2, 10, v4")
    e(f"    v_lshl_add_u32 v{V_VO}, v3, 4, v2")
    e(f"    v_add_u32 v{V_VA}, s{S_LDS}, v{V_VO}")
    e(f"    v_and_b32 v6, 3, v3")
    e(f"    v_xor_b32 v6, v6, v4")
    e(f"    v_lshrrev_b32 v7, 2, v3")
    e(f"    v_lshl_add_u32 v6, v6, 2, v7")
    e(f"    v_lshlrev_b32 v6, 4, v6")
    e(f"    v_lshl_add_u32 v6, v3, 8, v6")
    e(f"    v_add_u32 v{V_KA}, s{S_LDS}, v6")
    for j in range(1, 4):
        e(f"    v_xor_b32 v{V_KA+j}, {j<<4}, v{V_KA}")
    for r in range(4):
        m = 0
        for l in range(64):
            if 4*(l >> 4) + r <= (l & 15): m |= 1 << l
        e(f"    s_mov_b32 s{S_MASK+2*r}, 0x{m & 0xffffffff:08x}")
        e(f"    s_mov_b32 s{S_MASK+2*r+1}, 0x{m >> 32:08x}")
    for s, c in ((S_M5, 0x55555555), (S_MA, 0xaaaaaaaa), (S_M3, 0x33333333), (S_MC, 0xcccccccc)):
        e(f"    s_mov_b32 s{s}, 0x{c:08x}")
        e(f"    s_mov_b32 s{s+1}, s{s}")
    e(f"    s_mov_b32 s{S_PLO}, 0x05040100")
    e(f"    s_mov_b32 s{S_PHI}, 0x07060302")
    e(f"    s_mov_b32 s{S_SCALE}, 0x{f32bits(128**-0.5):08x}")
    e(f"    s_mov_b32 s{S_LOG2E}, 0x{f32bits(1.4426950408889634 * (1.0 if mimic else 128**-0.5)):08x}")
    e(f"    s_mov_b32 s{S_HI16}, 0xffff0000")
    e(f"    v_mov_b32 v{V_A}, 0xffff")
    e(f"    v_mov_b32 v{V_B}, 0xffff0000")
    e(f"    v_cndmask_b32 v{V_T}, 0, v{V_A}, s[{S_MASK}:{S_MASK+1}]")
    e(f"    v_cndmask_b32 v{V_T+1}, 0, v{V_B}, s[{S_MASK+2}:{S_MASK+3}]")
    e(f"    v_cndmask_b32 v{V_T+2}, 0, v{V_A}, s[{S_MASK+4}:{S_MASK+5}]")
    e(f"    v_cndmask_b32 v{V_T+3}, 0, v{V_B}, s[{S_MASK+6}:{S_MASK+7}]")
    e(f"    v_or_b32 v{V_M01}, v{V_T}, v{V_T+1}")
    e(f"    v_or_b32 v{V_M23}, v{V_T+2}, v{V_T+3}")
    for r in range(4):
        e(f"    v_mov_b32 v{V_CI+r}, s{S_CINIT}")
    if hlp is not None:
        P, NP, mm = hlp
        G = P//2
        e(f"    s_mul_i32 s6, s62, 11"); e(f"    s_lshr_b32 s6, s6, 5")
        e(f"    s_mul_i32 s7, s6, 3"); e(f"    s_sub_u32 s7, s62, s7")
        e(f"    s_cmp_eq_u32 s7, 1"); e(f"    s_cselect_b64 s[36:37], s[{SK}:{SK+1}], s[{SQ}:{SQ+1}]")
        e(f"    s_cmp_eq_u32 s7, 2"); e(f"    s_cselect_b64 s[36:37], s[{SV}:{SV+1}], s[36:37]")
        e(f"    s_mov_b32 s38, 0x1000000"); e(f"    s_mov_b32 s39, 0x00020000")
        e(f"    s_lshr_b32 s7, s6, {G.bit_length()-1}")
        e(f"    s_and_b32 s8, s6, {G-1}")
        e(f"    s_lshl_b32 s8, s8, 1"); e(f"    s_add_u32 s8, s8, {W-P}")
        e(f"    v_lshrrev_b32 v41, 5, v0"); e(f"    v_add_u32 v41, s8, v41")
        if rot is not None and len(rot) > 3 and rot[3] != 1: e(f"    v_mul_u32_u24 v41, {rot[3]}, v41")
        e(f"    v_add_u32 v41, s11, v41"); e(f"    v_and_b32 v41, 15, v41"); e(f"    v_lshlrev_b32 v41, 12, v41")
        e(f"    v_and_b32 v42, 31, v0"); e(f"    v_lshl_add_u32 v41, v42, 7, v41")
        e(f"    s_lshr_b32 s8, s2, 3"); e(f"    s_add_u32 s8, s8, s7")
        if mm == "odd":
            e(f"    s_and_b32 s8, s8, 3"); e(f"    s_lshl_b32 s8, s8, 1"); e(f"    s_or_b32 s8, s8, 1")
        elif mm == "one":
            e(f"    s_mov_b32 s8, 1")
        else:
            e(f"    s_and_b32 s8, s8, 7"); e(f"    s_max_u32 s8, s8, 1")
        e(f"    s_lshl_b32 s8, s8, 21"); e(f"    s_xor_b32 s8, s8, s{S_WG}")
        e(f"    s_cmp_lt_u32 s7, {NP}"); e(f"    s_cselect_b32 s8, s8, 0x1000000")
        e(f"    s_cmp_lt_u32 s62, 15"); e(f"    s_cselect_b32 s8, s8, 0x1000000")
    if gate:
        e(f"    s_cmp_lg_u32 s10, {gate.get('pw',0)}")
        e(f"    s_cbranch_scc1 L_gopen")
        e(f"    s_movk_i32 s63, {gate.get('max',64)}")
        if gate.get('scope','x') == 'x':
            e(f"    s_and_b32 s62, s62, 0xffe0")
            e("L_gpoll:")
            e(f"    s_load_dwordx8 s[88:95], s[36:37], s62 glc")
            e(f"    s_sub_u32 s63, s63, 1")
            e(f"    s_cbranch_scc1 L_gopen")
            e(f"    s_waitcnt lgkmcnt(0)")
            e(f"    s_bcnt1_i32_b64 s88, s[88:89]"); e(f"    s_bcnt1_i32_b64 s90, s[90:91]")
            e(f"    s_bcnt1_i32_b64 s92, s[92:93]"); e(f"    s_bcnt1_i32_b64 s94, s[94:95]")
            e(f"    s_add_u32 s88, s88, s90"); e(f"    s_add_u32 s92, s92, s94"); e(f"    s_add_u32 s88, s88, s92")
            e(f"    s_cmp_lt_u32 s88, {gate['n']}")
            e(f"    s_cbranch_scc1 L_gpoll")
        else:
            e("L_gpoll:")
            e(f"    s_sub_u32 s63, s63, 1")
            e(f"    s_cbranch_scc1 L_gopen")
            e(f"    s_mov_b32 s86, 0")
            for h in range(2):
                e(f"    s_load_dwordx16 s[64:79], s[36:37], {128*h} glc")
                e(f"    s_load_dwordx16 s[84:99], s[36:37], {128*h+64} glc".replace("s[84:99]","s[84:99]"))
                e(f"    s_waitcnt lgkmcnt(0)")
                raise NotImplementedError
        e("L_gopen:")
        e(f"    s_waitcnt lgkmcnt(0)")
    if bub and bublate and "V" in bub:
        e(f"    s_cmp_ge_u32 s10, {bubreg['V']}"); e(f"    s_cbranch_scc1 L_bbl")
        e(f"    s_waitcnt vmcnt(0)")
        e(f"L_bbl:")
    if sync == "flag" and latebar and "I" in latepos:
        e(f"    s_barrier")
    if hlp is not None:
        e(f"    buffer_load_dword v43, v41, s[36:39], s8 offen")
    if storebar and storebar < W:
        if par is not None:
            e(f"    s_cmp_eq_u32 s9, 0"); e(f"    s_cselect_b32 s10, 31, s10")
        e(f"    s_cmp_lt_u32 s10, {storebar}")
        e(f"    s_cbranch_scc1 L_nob1")
        e(f"    s_barrier")
        e("L_nob1:")
    pos = {o: i for i, o in enumerate(order)}
    def vm(o): return 4*(2-pos[o]) + (1 if hlp is not None else 0)
    DP1 = "quad_perm:[1,0,3,2] row_mask:0xf bank_mask:0xf"
    DP2 = "quad_perm:[2,3,0,1] row_mask:0xf bank_mask:0xf"
    def transpose(R):
        T = VTMP
        e(f"    s_mov_b64 vcc, s[{S_M5}:{S_M5+1}]")
        for j0 in (0, 2):
            for x in range(4): e(f"    v_cndmask_b32_dpp v{T+4*j0+x}, v{R+4*(j0+1)+x}, v{R+4*j0+x}, vcc {DP1}")
        e(f"    s_mov_b64 vcc, s[{S_MA}:{S_MA+1}]")
        for j0 in (0, 2):
            for x in range(4): e(f"    v_cndmask_b32_dpp v{T+4*(j0+1)+x}, v{R+4*j0+x}, v{R+4*(j0+1)+x}, vcc {DP1}")
        e(f"    s_mov_b64 vcc, s[{S_M3}:{S_M3+1}]")
        for j0 in (0, 1):
            for x in range(4): e(f"    v_cndmask_b32_dpp v{R+4*j0+x}, v{T+4*(j0+2)+x}, v{T+4*j0+x}, vcc {DP2}")
        e(f"    s_mov_b64 vcc, s[{S_MC}:{S_MC+1}]")
        for j0 in (0, 1):
            for x in range(4): e(f"    v_cndmask_b32_dpp v{R+4*(j0+2)+x}, v{T+4*j0+x}, v{T+4*(j0+2)+x}, vcc {DP2}")
    def rdKp():
        for j in range(4): e(f"    ds_read_b128 {rng(VKP+4*j,4)}, v{V_KA+j}")
    def rdKc():
        for j in range(4): e(f"    ds_read_b128 {rng(VKC+4*j,4)}, v{V_KA+j} offset:8192")
    def rdVp():
        for r in range(4): e(f"    ds_read_b128 {rng(VVP+4*r,4)}, v{V_VA} offset:{4096+256*r}")
    def rdVc():
        for r in range(4): e(f"    ds_read_b128 {rng(VVC+4*r,4)}, v{V_VA} offset:{12288+256*r}")
    def publish(off):
        e(f"    s_mov_b64 exec, 1")
        e(f"    ds_write_b32 v{V_FO}, v{V_ONE} offset:{off}")
        e(f"    s_mov_b64 exec, -1")
    assert order in ("KQV", "QKV")
    if order == "QKV":
        e(f"    s_waitcnt vmcnt({vm('Q')})")
        transpose(VQ)
    e(f"    s_waitcnt vmcnt({vm('K')})")
    e("    ; STAMP 3")
    if latebar and "K" in latepos: e(f"    s_barrier")
    if kbar:
        e(f"    s_cmp_eq_u32 s9, 1"); e(f"    s_cbranch_scc1 L_nokb"); e(f"    s_barrier"); e("L_nokb:")
    if sync == "flag":
        publish(0)
        e(f"    ds_read_b32 v{V_F}, v{V_FP}")
        rdKp(); rdKc()
    else:
        rdKc()
        if order == "QKV":
            e(f"    s_barrier"); rdKp()
    if order == "KQV":
        e(f"    s_waitcnt vmcnt({vm('Q')})")
        transpose(VQ)
        if sync != "flag":
            e(f"    s_barrier"); rdKp()
    e(f"    s_waitcnt lgkmcnt(0)")
    if sync == "flag":
        e(f"    v_readfirstlane_b32 s{S_F}, v{V_F}")
        e(f"    s_cmp_eq_u32 s{S_F}, 1")
        e(f"    s_cbranch_scc0 L_kspin")
        e("L_kok:")
    for j in range(4):
        csc = "0" if j == 0 else rng(V_SC, 4)
        csp = rng(V_CI, 4) if j == 0 else rng(V_SP, 4)
        e(f"    v_mfma_f32_16x16x32_bf16 {rng(V_SC,4)}, {rng(VKC+4*j,4)}, {rng(VQ+4*j,4)}, {csc}")
        e(f"    v_mfma_f32_16x16x32_bf16 {rng(V_SP,4)}, {rng(VKP+4*j,4)}, {rng(VQ+4*j,4)}, {csp}")
    e(f"    s_nop 7")
    softmax(e, V_T, V_A, V_B, V_SP, V_SC, V_P, V_M01, V_M23, S_MASK, S_HI16, S_SCALE, S_LOG2E, mimic)
    e("    ; STAMP 4")
    if latebar and "S" in latepos: e(f"    s_barrier")
    e(f"    s_waitcnt vmcnt({vm('V')})")
    dowb('V')
    if latebar and "V" in latepos: e(f"    s_barrier")
    if sync == "flag":
        publish(4)
        rdVc()
        e(f"    ds_read_b32 v{V_F}, v{V_FP} offset:4")
        rdVp()
        e(f"    s_waitcnt lgkmcnt(5)")
    else:
        rdVc()
        e(f"    s_barrier")
        rdVp()
        e(f"    s_waitcnt lgkmcnt(4)")
    def perms(src, half):
        for m in range(4):
            for s, sel in ((0, S_PLO), (1, S_PHI)):
                tt = 2*m + s
                e(f"    v_perm_b32 v{VP+4*tt+half}, v{src+4+m}, v{src+m}, s{sel}")
                e(f"    v_perm_b32 v{VP+4*tt+half+1}, v{src+12+m}, v{src+8+m}, s{sel}")
    perms(VVC, 2)
    e(f"    s_waitcnt lgkmcnt(0)")
    if sync == "flag":
        e(f"    v_readfirstlane_b32 s{S_F}, v{V_F}")
        e(f"    s_cmp_eq_u32 s{S_F}, 1")
        e(f"    s_cbranch_scc0 L_vspin")
        e("L_vok:")
    perms(VVP, 0)
    e("    ; STAMP 5")
    e(f"    s_nop 1")
    for tt in range(8):
        e(f"    v_mfma_f32_16x16x32_bf16 {rng(VACC+4*tt,4)}, {rng(V_P,4)}, {rng(VP+4*tt,4)}, 0")
    e(f"    s_nop 7")
    vout = VQ
    if storebar:
        for r in range(4):
            for m in range(4):
                e(f"    v_cvt_pk_bf16_f32 v{vout+4*r+m}, v{VACC+4*(2*m)+r}, v{VACC+4*(2*m+1)+r}")
        if storebar < W:
            e(f"    s_cmp_ge_u32 s10, {storebar}")
            e(f"    s_cbranch_scc1 L_nob2")
        if sblo:
            e(f"    s_cmp_lt_u32 s10, {sblo}")
            e(f"    s_cbranch_scc1 L_nob2")
        e(f"    s_barrier")
        e("L_nob2:")
    def stores(pol):
        for r in range(4):
            for m in range(4):
                if not storebar: e(f"    v_cvt_pk_bf16_f32 v{vout+4*r+m}, v{VACC+4*(2*m)+r}, v{VACC+4*(2*m+1)+r}")
            if thr is not None and r > thr: e(f"    s_waitcnt vmcnt({thr})")
            e(f"    buffer_store_dwordx4 {rng(vout+4*r,4)}, v{V_VO}, s[{SO}:{SO+3}], s{S_CUR} offen offset:{256*r} {pol}".rstrip())
    if st2 is not None:
        e(f"    s_cmp_lt_u32 {'s10' if st2phys else 's3'}, {st2w}")
        e(f"    s_cbranch_scc1 L_st2")
        stores(st)
        e(f"    s_branch L_stdone")
        e("L_st2:")
        stores(st2)
        e("L_stdone:")
    else:
        stores(st)
    if hlp is not None: e(f"    s_waitcnt vmcnt(4)")
    dowb('E')
    e("    ; STAMP 6")
    e("L_end:")
    e("L_exit:")
    e("    s_endpgm")
    if sync == "flag":
        for nm, off, rd in (("k", 0, rdKp), ("v", 4, rdVp)):
            e(f"L_{nm}spin:")
            if sleep: e(f"    s_sleep 1")
            e(f"    ds_read_b32 v{V_F}, v{V_FP} offset:{off}")
            e(f"    s_waitcnt lgkmcnt(0)")
            e(f"    v_readfirstlane_b32 s{S_F}, v{V_F}")
            e(f"    s_cmp_eq_u32 s{S_F}, 1")
            e(f"    s_cbranch_scc0 L_{nm}spin")
            rd()
            e(f"    s_waitcnt lgkmcnt(0)")
            e(f"    s_branch L_{nm}ok")
    e("L_codeend:")
    e('.section .rodata,"a"')
    e(".p2align 6")
    e(f".amdhsa_kernel {NAME}_kernel")
    e(f"  .amdhsa_next_free_vgpr {nvgpr}")
    e(f"  .amdhsa_next_free_sgpr {96 if gate else 64}")
    e(f"  .amdhsa_accum_offset {(nvgpr+3)//4*4}")
    e(f"  .amdhsa_group_segment_fixed_size 0")
    e(f"  .amdhsa_kernarg_size 56")
    e(f"  .amdhsa_user_sgpr_count 2")
    e(f"  .amdhsa_user_sgpr_kernarg_segment_ptr 1")
    e(f"  .amdhsa_system_sgpr_workgroup_id_x 1")
    e(f"  .amdhsa_float_denorm_mode_32 3")
    e(f".end_amdhsa_kernel")
    s = "\n".join(L) + "\n"
    if stamps: s = stamp.add_stamps(s)
    else: s = "\n".join(l for l in s.split("\n") if "; STAMP" not in l)
    return s
```

```python
import re
PC=False
def add_stamps(src, wave_sreg="s14"):
    out=[]
    for line in src.split("\n"):
        m=re.match(r"\s*; STAMP (\d+)", line)
        if m:
            n=int(m.group(1))
            if n==4:
                if PC: out.append("    s_getpc_b64 s[72:73]")
                else: out.append("    s_getreg_b32 s72, hwreg(HW_REG_HW_ID)")
                out.append("    s_getreg_b32 s73, hwreg(HW_REG_XCC_ID)"); continue
            out.append(f"    s_memrealtime s[{64+2*n}:{65+2*n}]")
            if n==0: out.append("    s_load_dwordx2 s[80:81], s[0:1], 48")
            if n==1: out.append("    s_load_dword s85, s[80:81], 0")
            continue
        if line.startswith("L_end:"):
            out.append("    s_waitcnt vmcnt(0)")
            out.append("    s_memrealtime s[78:79]")
            out.append("    s_mov_b32 s82, 0x1000000")
            out.append("    s_mov_b32 s83, 0x00020000")
            out.append(f"    s_lshl_b32 s84, {wave_sreg}, 6")
            out.append("    s_waitcnt lgkmcnt(0)")
            for i in range(16):
                out.append(f"    v_mov_b32 v{8+i}, s{64+i}")
            out.append("    v_mov_b32 v0, 0")
            out.append("    s_mov_b64 exec, 1")
            for i in range(4):
                out.append(f"    buffer_store_dwordx4 v[{8+4*i}:{11+4*i}], v0, s[80:83], s84 offen offset:{16*i}")
            out.append("    s_waitcnt vmcnt(0)")
        line=re.sub(r"amdhsa_next_free_sgpr \d+","amdhsa_next_free_sgpr 96",line)
        out.append(line)
    return "\n".join(out)
```

```python
import sys; sys.path.insert(0,'gen')
import gen3
B=dict(W=16,fh="",flast="",sleep=False,order="QKV",rot=(3,5),latebar=True,st="sc1",barafter="QK")
V={'y_qk':dict(),
   'c_K16V8_4':dict(bub=dict(V=(8,4),K=(16,0))),
   'c_K16V8_0':dict(bub=dict(V=(8,0),K=(16,0))),
   'c_K16V6_2':dict(bub=dict(V=(6,2),K=(16,0))),
   'c_K16V4_4':dict(bub=dict(V=(4,4),K=(16,0))),
   'c_K16V6_6':dict(bub=dict(V=(6,6),K=(16,0))),
   'c_K16V10_4':dict(bub=dict(V=(10,4),K=(16,0))),
   'c_K14V8_4':dict(bub=dict(V=(8,4),K=(14,0))),
   'c_Q16V8_4':dict(bub=dict(V=(8,4),Q=(16,0))),
   'c_QK16V8_4':dict(bub=dict(V=(8,4),K=(16,0),Q=(16,0))),
   'c_QK16V4_4':dict(bub=dict(V=(4,4),K=(16,0),Q=(16,0))),
   'c_K16V8_4hv':dict(bub=dict(V=(8,4),K=(16,0)),halov=True),
   'c_K16V8_4r0':dict(bub=dict(V=(8,4),K=(16,0)),rot=None),
   'c_kq16V8_4':dict(bub=dict(V=(8,4),Q=(16,0)),order="KQV",barafter="KQ",halov=True),
}
names=[]
for k,a in V.items():
    s=gen3.gen(**{**B,**a})
    open(f'p/{k}.s','w').write(s); names.append(k)
print(" ".join(f"p/{k}.s" for k in names))
```

```python
import re,sys
def wrap(src, K=8, T0=2300, base=900, thr=100000, stat="span"):
    out=[]
    A=int(re.search(r"lds=(\d+)",src).group(1)); A=(A+15)//16*16
    src=re.sub(r"lds=\d+",f"lds={A+16}",src,1)
    for l in src.split("\n"):
        if l.startswith("L_end:"):
            e=out.append
            e("    s_waitcnt vmcnt(0)")
            e("    s_memrealtime s[66:67]")
            e("    s_mov_b32 s82, 0x100000"); e("    s_mov_b32 s83, 0x00020000")
            e("    s_mov_b32 s90, 256"); e("    s_mov_b32 s91, 0x00020000")
            e("    s_lshr_b32 s84, s14, 4"); e("    s_lshl_b32 s84, s84, 3")
            e("    s_not_b32 s85, s64")
            e(f"    v_mov_b32 v7, {A}")
            e("    v_mov_b32 v10, 1")
            e("    s_waitcnt lgkmcnt(0)")
            e("    v_mov_b32 v8, s85"); e("    v_mov_b32 v9, s66")
            e("    s_mov_b64 exec, 1")
            e("    ds_max_u32 v7, v8"); e("    ds_max_u32 v7, v9 offset:4")
            e("    ds_add_rtn_u32 v10, v7, v10 offset:8")
            e("    ds_read_b64 v[8:9], v7")
            e("    s_waitcnt lgkmcnt(0)")
            e("    v_readfirstlane_b32 s85, v10")
            e("    v_not_b32 v8, v8")
            e("    s_cmp_lg_u32 s85, 15")
            e("    s_cbranch_scc1 L_nst")
            e("    buffer_store_dwordx2 v[8:9], off, s[80:83], s84 sc1")
            e("L_nst:")
            e("    s_mov_b64 exec, -1")
            e("    s_cmp_lg_u32 s14, 0")
            e("    s_cbranch_scc1 L_end")
            e(f"    s_add_u32 s70, s64, {T0-400}")
            e("L_w1:")
            e("    s_sleep 8")
            e("    s_memrealtime s[68:69]"); e("    s_waitcnt lgkmcnt(0)")
            e("    s_sub_u32 s71, s68, s70"); e("    s_cmp_lt_i32 s71, 0"); e("    s_cbranch_scc1 L_w1")
            e("    v_lshlrev_b32 v1, 3, v0")
            e("    v_mov_b32 v4, 0x7fffffff"); e("    v_mov_b32 v5, 0x7fffffff"); e("    v_mov_b32 v6, 0")
            for i in range(4):
                e(f"    buffer_load_dwordx2 v[{10+2*i}:{11+2*i}], v1, s[80:83], 0 offen offset:{512*i} sc0 sc1")
            e("    s_waitcnt vmcnt(0)")
            for i in range(4):
                e(f"    v_subrev_u32 v{10+2*i}, s64, v{10+2*i}"); e(f"    v_subrev_u32 v{11+2*i}, s64, v{11+2*i}")
                e(f"    v_min_i32 v{4+i//2}, v{4+i//2}, v{10+2*i}"); e(f"    v_max_i32 v6, v6, v{11+2*i}")
            e("    s_mov_b32 s72, 0x7fffffff"); e("    s_mov_b32 s73, 0x7fffffff"); e("    s_mov_b32 s74, 0")
            e("    s_mov_b32 s78, 0")
            e("    s_nop 4")
            e("L_red:")
            e(f"    v_readlane_b32 s75, v4, s78"); e(f"    v_readlane_b32 s76, v5, s78"); e(f"    v_readlane_b32 s77, v6, s78")
            e("    s_min_i32 s72, s72, s75"); e("    s_min_i32 s73, s73, s76"); e("    s_max_i32 s74, s74, s77")
            e("    s_add_u32 s78, s78, 1"); e("    s_cmp_lt_u32 s78, 64"); e("    s_nop 4"); e("    s_cbranch_scc1 L_red")
            e("    s_sub_i32 s75, s73, s72")
            e("    s_min_i32 s72, s72, s73")
            e("    s_sub_i32 s74, s74, s72")
            e("    v_mov_b32 v8, s74"); e("    v_mov_b32 v9, s75")
            e("    s_mov_b64 exec, 1")
            e("    buffer_store_dwordx2 v[8:9], off, s[88:91], 0 sc1")
            e("    s_mov_b64 exec, -1")
            if stat=="span":
                e(f"    s_sub_i32 s74, s74, {base}")
            else:
                e(f"    s_add_i32 s74, s75, 100")
            e(f"    s_mul_i32 s74, s74, {K}")
            e("    s_max_i32 s74, s74, 0"); e("    s_min_i32 s74, s74, 3900")
            e(f"    s_cmp_gt_i32 s75, {thr}")
            e("    s_cselect_b32 s75, 4000, 0")
            e("    s_add_u32 s74, s74, s75")
            e("    s_add_u32 s74, s74, s72")
            e(f"    s_add_u32 s70, s64, {T0}")
            e("    s_add_u32 s70, s70, s74")
            e("L_w2:")
            e("    s_memrealtime s[68:69]"); e("    s_waitcnt lgkmcnt(0)")
            e("    s_sub_u32 s71, s68, s70"); e("    s_cmp_lt_i32 s71, 0"); e("    s_cbranch_scc1 L_w2")
            e("    s_waitcnt vmcnt(0)")
        l=re.sub(r"amdhsa_next_free_sgpr \d+","amdhsa_next_free_sgpr 96",l)
        out.append(l)
        if l.startswith("standalone") and l.strip().endswith(":"):
            out.append("    s_memrealtime s[64:65]")
            out.append("    s_load_dwordx2 s[80:81], s[0:1], 48")
            out.append("    s_load_dwordx2 s[88:89], s[0:1], 40")
        if "ds_write_b64 v37" in l and "L_zero" not in "".join(out[-3:]) and not any("v_mov_b32 v120" in x for x in out):
            out.append(f"    v_mov_b32 v120, {A}")
            out.append("    ds_write_b64 v120, v[42:43]"); out.append("    ds_write_b64 v120, v[42:43] offset:8")
    return "\n".join(out)
if __name__=="__main__":
    for n in sys.argv[1:]:
        open(f"os_{n}.s","w").write(wrap(open(f"p/{n}.s").read()))
    print(" ".join(f"p/os_{n}.s" for n in sys.argv[1:]))
```

```python
import struct
import stamp

NAME = "standalone__sliding_local_chunked__prompt"
def f32bits(x): return struct.unpack("<I", struct.pack("<f", x))[0]

HEADER = """; Kernarg layout for this problem (56 bytes, ptrs only, base s[0:1]):
"""

def softmax(e, T, V_A, V_B, V_SP, V_SC, V_P, V_M01, V_M23, S_MASK, S_HI16, S_SCALE, S_LOG2E, mimic):
    for r in range(4):
        e(f"    v_cndmask_b32 v{T+r}, v{V_SP+r}, v{V_SC+r}, s[{S_MASK+2*r}:{S_MASK+2*r+1}]")
    if mimic:
        e(f"    v_cvt_pk_bf16_f32 v{V_A}, v{T}, v{T+1}")
        e(f"    v_cvt_pk_bf16_f32 v{V_B}, v{T+2}, v{T+3}")
        e(f"    v_lshlrev_b32 v{T}, 16, v{V_A}")
        e(f"    v_and_b32 v{T+1}, s{S_HI16}, v{V_A}")
        e(f"    v_lshlrev_b32 v{T+2}, 16, v{V_B}")
        e(f"    v_and_b32 v{T+3}, s{S_HI16}, v{V_B}")
        for r in range(4):
            e(f"    v_mul_f32 v{T+r}, s{S_SCALE}, v{T+r}")
        e(f"    v_cvt_pk_bf16_f32 v{V_A}, v{T}, v{T+1}")
        e(f"    v_cvt_pk_bf16_f32 v{V_B}, v{T+2}, v{T+3}")
        e(f"    v_lshlrev_b32 v{T}, 16, v{V_A}")
        e(f"    v_and_b32 v{T+1}, s{S_HI16}, v{V_A}")
        e(f"    v_lshlrev_b32 v{T+2}, 16, v{V_B}")
        e(f"    v_and_b32 v{T+3}, s{S_HI16}, v{V_B}")
    e(f"    v_max3_f32 v{V_A}, v{T}, v{T+1}, v{T+2}")
    e(f"    v_max_f32 v{V_A}, v{V_A}, v{T+3}")
    e(f"    v_mov_b32 v{V_B}, v{V_A}")
    e(f"    s_nop 1")
    e(f"    v_permlane16_swap_b32 v{V_A}, v{V_B}")
    e(f"    s_nop 1")
    e(f"    v_max_f32 v{V_A}, v{V_A}, v{V_B}")
    e(f"    v_mov_b32 v{V_B}, v{V_A}")
    e(f"    s_nop 1")
    e(f"    v_permlane32_swap_b32 v{V_A}, v{V_B}")
    e(f"    s_nop 1")
    e(f"    v_max_f32 v{V_A}, v{V_A}, v{V_B}")
    for r in range(4):
        e(f"    v_sub_f32 v{T+r}, v{T+r}, v{V_A}")
    for r in range(4):
        e(f"    v_mul_f32 v{T+r}, s{S_LOG2E}, v{T+r}")
    for r in range(4):
        e(f"    v_exp_f32 v{T+r}, v{T+r}")
    e(f"    s_nop 0")
    e(f"    v_add_f32 v{V_A}, v{T}, v{T+1}")
    e(f"    v_add_f32 v{V_B}, v{T+2}, v{T+3}")
    e(f"    v_add_f32 v{V_A}, v{V_A}, v{V_B}")
    e(f"    v_mov_b32 v{V_B}, v{V_A}")
    e(f"    s_nop 1")
    e(f"    v_permlane16_swap_b32 v{V_A}, v{V_B}")
    e(f"    s_nop 1")
    e(f"    v_add_f32 v{V_A}, v{V_A}, v{V_B}")
    e(f"    v_mov_b32 v{V_B}, v{V_A}")
    e(f"    s_nop 1")
    e(f"    v_permlane32_swap_b32 v{V_A}, v{V_B}")
    e(f"    s_nop 1")
    e(f"    v_add_f32 v{V_A}, v{V_A}, v{V_B}")
    e(f"    v_rcp_f32 v{V_A}, v{V_A}")
    e(f"    s_nop 0")
    for r in range(4):
        e(f"    v_mul_f32 v{T+r}, v{T+r}, v{V_A}")
    e(f"    v_cvt_pk_bf16_f32 v{V_A}, v{T}, v{T+1}")
    e(f"    v_cvt_pk_bf16_f32 v{V_B}, v{T+2}, v{T+3}")
    e(f"    v_and_b32 v{V_P+2}, v{V_M01}, v{V_A}")
    e(f"    v_and_b32 v{V_P+3}, v{V_M23}, v{V_B}")
    e(f"    v_xor_b32 v{V_P}, v{V_P+2}, v{V_A}")
    e(f"    v_xor_b32 v{V_P+1}, v{V_P+3}, v{V_B}")

def gen(W=16, fq="nt", fk="nt", fv="nt", fh="nt", flast=None, st="sc1", xcd=True, mimic=True, sync="flag",
        ldsmin=0, stamps=False, order="KQV", latebar=False, touch=None, prio=None, stouch="", vtouch=False, rot=None, midbar=False, storebar=0, thr=None, st2=None, st2w=8, sblo=0, sleep=True, par=None, kbar=False, cpf=None, hlp=None, tailpol="", gate=None, wb=None, st2phys=False, barafter="", latepos="I", halov=False, inner="", bub=None, bublate=True, polv=None, polo=None, halok=False, haloafter=False):
    assert 'I' in latepos or midbar or barafter
    assert rot is None or storebar in (0, W), 'storebar<W with rot deadlocks'
    NWG = 4096 // W
    FL = (W+1)*8192
    LDS = FL + (8*(W+1) if sync == "flag" else 0)
    LDS = max(LDS, ldsmin)
    L = []; e = L.append
    e(HEADER.rstrip())
    e(f"; @launch grid=({NWG},1,1) block=({64*W},1,1) lds={LDS}")
    e('.amdgcn_target "amdgcn-amd-amdhsa--gfx950"')
    e(".text"); e(f".globl {NAME}_kernel"); e(".p2align 8"); e(f".type {NAME}_kernel,@function"); e(f"{NAME}_kernel:")
    SQ, SK, SV, SO = 16, 20, 24, 28
    S_HALO, S_CUR = 32, 33
    S_LDS = 34
    S_F = 35
    S_WG = 15
    S_MASK = 40; S_PLO, S_PHI = 48, 49; S_SCALE, S_LOG2E = 50, 51; S_CINIT = 52; S_HI16 = 53
    S_M5, S_MA, S_M3, S_MC = 54, 56, 58, 60
    V_QK, V_VO = 1, 2
    V_M01, V_M23 = 3, 4
    V_F = 5
    V_T = 6; V_A, V_B = 10, 11; V_P = 12; V_SP, V_SC = 16, 20; V_CI = 24
    V_KA = 28; V_GK = 32; V_VA = 36; V_FO, V_FP, V_ONE = 37, 38, 39; V_GV = 40; V_Z = 42
    VQ = 44; VKP = 60; VKC = 76; VVP = 92; VVC = 108
    VTMP = VVP
    VP = VKP
    VACC = VVP
    nvgpr = 124
    def rng(b, n): return f"v[{b}:{b+n-1}]"
    def dowb(p):
        if wb and wb['pos'] == p:
            e(f"    s_cmp_lg_u32 s9, {wb.get('wg',0)*16 + wb['w']}")
            e(f"    s_cbranch_scc1 L_nowb")
            e(f"    buffer_wbl2 sc1")
            e("L_nowb:")

    e("    ; STAMP 0")
    e(f"    s_load_dwordx2 s[{SK}:{SK+1}], s[0:1], 8")
    e(f"    s_load_dwordx2 s[{SQ}:{SQ+1}], s[0:1], 0")
    e(f"    s_load_dwordx2 s[{SV}:{SV+1}], s[0:1], 16")
    e(f"    s_load_dwordx2 s[{SO}:{SO+1}], s[0:1], 32")
    if gate: e(f"    s_load_dwordx2 s[36:37], s[0:1], 40")
    e(f"    s_cmp_ge_u32 s2, {NWG}")
    e(f"    s_cbranch_scc1 L_exit")
    e(f"    v_lshrrev_b32 v1, 6, v0")
    e(f"    v_and_b32 v0, 63, v0")
    if cpf is not None:
        e(f"    v_readfirstlane_b32 s62, v1")
        e(f"    s_getpc_b64 s[36:37]")
        e("L_pc:")
        e(f"    s_sub_u32 s36, s36, L_pc-{NAME}_kernel")
        e(f"    s_subb_u32 s37, s37, 0")
        e(f"    s_mov_b32 s38, L_codeend-{NAME}_kernel")
        e(f"    s_mov_b32 s39, 0x00020000")
        e(f"    v_lshlrev_b32 v41, 6, v0")
        e(f"    s_cmp_lg_u32 s62, {cpf}")
        e(f"    s_cbranch_scc1 L_nocpf")
        e(f"    buffer_load_dword v{V_F}, v41, s[36:39], 0 offen")
        e("L_nocpf:")
    if hlp is not None:
        e(f"    v_readfirstlane_b32 s62, v1")
        if rot is None: e(f"    s_mov_b32 s11, 0")
    if par is not None:
        e(f"    s_and_b32 s9, s2, 1")
        if par == 0: e(f"    s_xor_b32 s9, s9, 1")
    if storebar or gate or wb or st2phys or bub:
        e(f"    v_readfirstlane_b32 s10, v1")
    if rot is not None:
        e(f"    s_lshr_b32 s11, s2, {rot[0]}")
        e(f"    s_mul_i32 s11, s11, {rot[1]}")
        if len(rot) > 2 and rot[2]:
            e(f"    s_and_b32 s8, s2, 7")
            e(f"    s_mul_i32 s8, s8, {rot[2]}")
            e(f"    s_add_u32 s11, s11, s8")
        if len(rot) > 4 and rot[4]:
            e(f"    s_lshr_b32 s8, s2, 7")
            e(f"    s_mul_i32 s8, s8, {rot[4]}")
            e(f"    s_add_u32 s11, s11, s8")
        if len(rot) > 3 and rot[3] != 1:
            e(f"    v_mul_u32_u24 v1, {rot[3]}, v1")
        e(f"    v_add_u32 v1, s11, v1")
        e(f"    v_and_b32 v1, {W-1}, v1")
        e(f"    s_nop 0")
    e(f"    v_readfirstlane_b32 s3, v1")
    if sync == "flag":
        e(f"    v_lshlrev_b32 v{V_FP}, 3, v1")
        e(f"    v_add_u32 v{V_FO}, {FL+8}, v{V_FP}")
        e(f"    v_mov_b32 v{V_Z}, 0")
        e(f"    v_mov_b32 v{V_Z+1}, 0")
        e(f"    s_mov_b64 exec, 1")
        e(f"    ds_write_b64 v{V_FO}, {rng(V_Z,2)}")
        e(f"    s_mov_b64 exec, -1")
        e(f"    v_max_u32 v{V_FP}, 8, v{V_FP}")
        e(f"    v_add_u32 v{V_FP}, {FL}, v{V_FP}")
        e(f"    v_mov_b32 v{V_ONE}, 1")
    if xcd:
        e(f"    s_and_b32 s12, s2, 7")
        e(f"    s_lshr_b32 s13, s2, 3")
        e(f"    s_mul_i32 s12, s12, {NWG//8}")
        e(f"    s_add_u32 s12, s12, s13")
    else:
        e(f"    s_mov_b32 s12, s2")
    for s in (SQ, SK, SV, SO):
        e(f"    s_mov_b32 s{s+2}, 0x1000000")
        e(f"    s_mov_b32 s{s+3}, 0x00020000")
    if gate:
        e(f"    s_mov_b32 s38, {8*gate.get('stride',32)}")
        e(f"    s_mov_b32 s39, 0x00020000")
        e(f"    s_and_b32 s62, s2, 7")
        e(f"    s_mul_i32 s62, s62, {gate.get('stride',32)}")
        e(f"    s_add_u32 s62, s62, s13")
    if bub:
        bubreg = {}
        for (t, nt), reg in zip(bub.items(), (9, 8, 63)):
            bubreg[t] = f"s{reg}"
            if len(nt) == 2 and nt[0] == nt[1]:
                bubreg[t] = str(nt[0]); continue
            if len(nt) == 2:
                e(f"    s_getreg_b32 s{reg}, hwreg(HW_REG_XCC_ID, 0, 1)")
                e(f"    s_cmp_eq_u32 s{reg}, 0")
                e(f"    s_cselect_b32 s{reg}, {nt[0]}, {nt[1]}")
                continue
            lo = sum(n << (8*x) for x, n in enumerate(nt[:4])); hi = sum(n << (8*x) for x, n in enumerate(nt[4:]))
            e(f"    s_getreg_b32 s{reg}, hwreg(HW_REG_XCC_ID, 0, 3)")
            e(f"    s_mov_b32 s6, 0x{lo:08x}"); e(f"    s_mov_b32 s7, 0x{hi:08x}")
            e(f"    s_lshl_b32 s{reg}, s{reg}, 3")
            e(f"    s_lshr_b64 s[6:7], s[6:7], s{reg}")
            e(f"    s_and_b32 s{reg}, s6, 0xff")
    if wb:
        e(f"    s_lshr_b32 s9, s2, 3")
        e(f"    s_and_b32 s9, s9, {wb.get('mask',31)}")
        e(f"    s_lshl_b32 s9, s9, 4")
        e(f"    s_add_u32 s9, s9, s10")
    e(f"    v_lshrrev_b32 v4, 4, v0")
    e(f"    v_and_b32 v3, 15, v0")
    e(f"    s_mul_i32 s12, s12, {W}")
    e(f"    s_lshl_b32 s{S_WG}, s12, 12")
    if vtouch:
        e(f"    s_mov_b32 s38, 0x1000000")
        e(f"    s_mov_b32 s39, 0x00020000")
    e(f"    s_add_u32 s12, s12, s3")
    e(f"    s_mov_b32 s14, s12")
    e(f"    s_lshl_b32 s{S_CUR}, s12, 12")
    e(f"    s_sub_u32 s{S_HALO}, s{S_CUR}, 0x1000")
    e(f"    s_and_b32 s13, s12, 127")
    e(f"    s_cselect_b32 s{S_HALO}, s{S_HALO}, 0x1000000")
    e(f"    s_cselect_b32 s{S_CINIT}, 0, 0x{f32bits(-1e30):08x}")
    e(f"    s_lshl_b32 s{S_LDS}, s3, 13")
    if polv is not None or polo is not None:
        e(f"    s_getreg_b32 s62, hwreg(HW_REG_XCC_ID, 2, 1)")
        e(f"    s_lshr_b32 s6, s12, 1"); e(f"    s_xor_b32 s62, s62, s6")
        e(f"    s_lshr_b32 s6, s12, 9"); e(f"    s_xor_b32 s62, s62, s6")
        e(f"    s_and_b32 s62, s62, 1")
    e(f"    v_lshlrev_b32 v6, 2, v4")
    e(f"    v_xor_b32 v6, v6, v3")
    e(f"    v_lshlrev_b32 v6, 4, v6")
    e(f"    v_lshl_add_u32 v{V_GK}, v4, 8, v6")
    for j in range(1, 4):
        e(f"    v_xor_b32 v{V_GK+j}, {j<<4}, v{V_GK}")
    e(f"    v_lshlrev_b32 v{V_GV}, 4, v0")
    e(f"    v_bfe_u32 v6, v0, 2, 2")
    e(f"    v_lshlrev_b32 v6, 10, v6")
    e(f"    v_and_b32 v7, 3, v0")
    e(f"    v_lshl_add_u32 v6, v4, 6, v6")
    e(f"    v_lshl_add_u32 v{V_QK}, v7, 4, v6")
    e(f"    s_add_u32 s4, s{S_LDS}, 8192")
    e(f"    s_add_u32 s5, s{S_LDS}, 12288")
    e(f"    s_waitcnt lgkmcnt(0)")
    if sync == "flag" and not latebar and not midbar and not barafter:
        e(f"    s_barrier")
    e("    ; STAMP 1")
    for i, t in enumerate(stouch):
        sb = {"Q": SQ, "K": SK, "V": SV, "O": SO}[t]
        e(f"    s_load_dword s{6+i}, s[{sb}:{sb+1}], s{S_WG}")
    if vtouch:
        e(f"    s_bitcmp1_b32 s2, 3")
        e(f"    s_cselect_b64 s[36:37], s[{SQ}:{SQ+1}], s[{SK}:{SK+1}]")
        e(f"    s_cselect_b64 s[6:7], s[{SV}:{SV+1}], s[{SO}:{SO+1}]")
        e(f"    s_bitcmp1_b32 s2, 4")
        e(f"    s_cselect_b64 s[36:37], s[36:37], s[6:7]")
        e(f"    buffer_load_dword v{V_F}, off, s[36:39], s{S_WG}")
    if not (halok and halov):
        e(f"    s_cmp_lg_u32 s3, 0")
        e(f"    s_cbranch_scc1 L_nohalo")
        e(f"    s_mov_b32 m0, 0")
        e(f"    s_nop 0")
        for j in range(4):
            e(f"    buffer_load_dwordx4 v{V_GK+j}, s[{SK}:{SK+3}], s{S_HALO} offen offset:{1024*j} {fh} lds")
        if not halov:
            e(f"    s_mov_b32 m0, 4096")
            e(f"    s_nop 0")
            for j in range(4):
                e(f"    buffer_load_dwordx4 v{V_GV}, s[{SV}:{SV+3}], s{S_HALO} offen offset:{1024*j} {fh} lds")
        if touch is not None:
            e(f"    s_mov_b64 exec, 1")
            e(f"    buffer_load_dword v{V_F}, v{V_GV}, s[{SO}:{SO+3}], s{S_CUR} offen {touch}")
            e(f"    s_mov_b64 exec, -1")
        e("L_nohalo:")
    def signal():
        lab = f"L_sg{len(L)}"
        e(f"    s_cmp_lg_u32 s10, {gate['w']}")
        e(f"    s_cbranch_scc1 {lab}")
        e(f"    s_mov_b64 exec, 1")
        e(f"    buffer_store_byte v{V_ONE}, off, s[36:39], s62 {gate.get('pol','')}".rstrip())
        e(f"    s_mov_b64 exec, -1")
        e(f"{lab}:")
    def issue(fk_, fv_, fq=fq):
        for oi, o in enumerate(order + "."):
            if gate and gate['pos'] == oi: signal()
            if oi and bub and order[oi-1] in bub and not (o == "." and bublate):
                lab = f"L_bb{len(L)}"
                e(f"    s_cmp_ge_u32 s10, {bubreg[order[oi-1]]}"); e(f"    s_cbranch_scc1 {lab}")
                e(f"    s_waitcnt vmcnt(0)")
                e(f"{lab}:")
            if oi and order[oi-1] in barafter: e(f"    s_barrier")
            if o == "K" and halok:
                lab = f"L_hk{len(L)}"
                e(f"    s_cmp_lg_u32 s3, 0"); e(f"    s_cbranch_scc1 {lab}")
                e(f"    s_mov_b32 m0, 0"); e(f"    s_nop 0")
                for j in range(4):
                    e(f"    buffer_load_dwordx4 v{V_GK+j}, s[{SK}:{SK+3}], s{S_HALO} offen offset:{1024*j} {fh} lds")
                e(f"{lab}:")
            if o == "V" and halov:
                lab = f"L_hv{len(L)}"
                e(f"    s_cmp_lg_u32 s3, 0"); e(f"    s_cbranch_scc1 {lab}")
                e(f"    s_mov_b32 m0, 4096"); e(f"    s_nop 0")
                for j in range(4):
                    e(f"    buffer_load_dwordx4 v{V_GV}, s[{SV}:{SV+3}], s{S_HALO} offen offset:{1024*j} {fh} lds")
                e(f"{lab}:")
            if o == ".": pass
            elif o == "K":
                e(f"    s_mov_b32 m0, s4")
                e(f"    s_nop 0")
                for j in range(4):
                    e(f"    buffer_load_dwordx4 v{V_GK+j}, s[{SK}:{SK+3}], s{S_CUR} offen offset:{1024*j} {fk_} lds")
                    if f"K{j}" in inner: e(f"    s_barrier")
                    if midbar and j == midbar-1:
                        if par is not None:
                            lab = f"L_mb{len(L)}"
                            e(f"    s_cmp_eq_u32 s9, 0"); e(f"    s_cbranch_scc1 {lab}"); e(f"    s_barrier"); e(f"{lab}:")
                        else: e(f"    s_barrier")
            elif o == "Q":
                for j in range(4):
                    e(f"    buffer_load_dwordx4 {rng(VQ+4*j,4)}, v{V_QK}, s[{SQ}:{SQ+3}], s{S_CUR} offen offset:{256*j} {fq}")
                    if f"Q{j}" in inner: e(f"    s_barrier")
            else:
                if polv is not None:
                    lab = f"L_pv{len(L)}"
                    e(f"    s_cmp_eq_u32 s62, {polv}"); e(f"    s_cbranch_scc1 {lab}"); e(f"    s_barrier"); e(f"{lab}:")
                e(f"    s_mov_b32 m0, s5")
                e(f"    s_nop 0")
                for j in range(4):
                    e(f"    buffer_load_dwordx4 v{V_GV}, s[{SV}:{SV+3}], s{S_CUR} offen offset:{1024*j} {fv_} lds")
                    if f"V{j}" in inner: e(f"    s_barrier")
                if polv is not None:
                    lab = f"L_pw{len(L)}"
                    e(f"    s_cmp_lg_u32 s62, {polv}"); e(f"    s_cbranch_scc1 {lab}"); e(f"    s_barrier"); e(f"{lab}:")
    if hlp is not None and tailpol is not None:
        e(f"    s_cmp_lt_u32 s62, {W-hlp[0]}")
        e(f"    s_cbranch_scc1 L_nottail")
        issue(tailpol, tailpol, tailpol)
        e(f"    s_branch L_issued")
        e("L_nottail:")
    if flast is not None:
        e(f"    s_cmp_eq_u32 s3, {W-1}")
        e(f"    s_cbranch_scc1 L_last")
        issue(fk, fv)
        e(f"    s_branch L_issued")
        e("L_last:")
        issue(flast, flast)
        e("L_issued:")
    else:
        issue(fk, fv)
    e("    ; STAMP 2")
    dowb('I')
    e(f"    v_lshlrev_b32 v2, 10, v4")
    e(f"    v_lshl_add_u32 v{V_VO}, v3, 4, v2")
    e(f"    v_add_u32 v{V_VA}, s{S_LDS}, v{V_VO}")
    e(f"    v_and_b32 v6, 3, v3")
    e(f"    v_xor_b32 v6, v6, v4")
    e(f"    v_lshrrev_b32 v7, 2, v3")
    e(f"    v_lshl_add_u32 v6, v6, 2, v7")
    e(f"    v_lshlrev_b32 v6, 4, v6")
    e(f"    v_lshl_add_u32 v6, v3, 8, v6")
    e(f"    v_add_u32 v{V_KA}, s{S_LDS}, v6")
    for j in range(1, 4):
        e(f"    v_xor_b32 v{V_KA+j}, {j<<4}, v{V_KA}")
    for r in range(4):
        m = 0
        for l in range(64):
            if 4*(l >> 4) + r <= (l & 15): m |= 1 << l
        e(f"    s_mov_b32 s{S_MASK+2*r}, 0x{m & 0xffffffff:08x}")
        e(f"    s_mov_b32 s{S_MASK+2*r+1}, 0x{m >> 32:08x}")
    for s, c in ((S_M5, 0x55555555), (S_MA, 0xaaaaaaaa), (S_M3, 0x33333333), (S_MC, 0xcccccccc)):
        e(f"    s_mov_b32 s{s}, 0x{c:08x}")
        e(f"    s_mov_b32 s{s+1}, s{s}")
    e(f"    s_mov_b32 s{S_PLO}, 0x05040100")
    e(f"    s_mov_b32 s{S_PHI}, 0x07060302")
    e(f"    s_mov_b32 s{S_SCALE}, 0x{f32bits(128**-0.5):08x}")
    e(f"    s_mov_b32 s{S_LOG2E}, 0x{f32bits(1.4426950408889634 * (1.0 if mimic else 128**-0.5)):08x}")
    e(f"    s_mov_b32 s{S_HI16}, 0xffff0000")
    e(f"    v_mov_b32 v{V_A}, 0xffff")
    e(f"    v_mov_b32 v{V_B}, 0xffff0000")
    e(f"    v_cndmask_b32 v{V_T}, 0, v{V_A}, s[{S_MASK}:{S_MASK+1}]")
    e(f"    v_cndmask_b32 v{V_T+1}, 0, v{V_B}, s[{S_MASK+2}:{S_MASK+3}]")
    e(f"    v_cndmask_b32 v{V_T+2}, 0, v{V_A}, s[{S_MASK+4}:{S_MASK+5}]")
    e(f"    v_cndmask_b32 v{V_T+3}, 0, v{V_B}, s[{S_MASK+6}:{S_MASK+7}]")
    e(f"    v_or_b32 v{V_M01}, v{V_T}, v{V_T+1}")
    e(f"    v_or_b32 v{V_M23}, v{V_T+2}, v{V_T+3}")
    for r in range(4):
        e(f"    v_mov_b32 v{V_CI+r}, s{S_CINIT}")
    if hlp is not None:
        P, NP, mm = hlp
        G = P//2
        e(f"    s_mul_i32 s6, s62, 11"); e(f"    s_lshr_b32 s6, s6, 5")
        e(f"    s_mul_i32 s7, s6, 3"); e(f"    s_sub_u32 s7, s62, s7")
        e(f"    s_cmp_eq_u32 s7, 1"); e(f"    s_cselect_b64 s[36:37], s[{SK}:{SK+1}], s[{SQ}:{SQ+1}]")
        e(f"    s_cmp_eq_u32 s7, 2"); e(f"    s_cselect_b64 s[36:37], s[{SV}:{SV+1}], s[36:37]")
        e(f"    s_mov_b32 s38, 0x1000000"); e(f"    s_mov_b32 s39, 0x00020000")
        e(f"    s_lshr_b32 s7, s6, {G.bit_length()-1}")
        e(f"    s_and_b32 s8, s6, {G-1}")
        e(f"    s_lshl_b32 s8, s8, 1"); e(f"    s_add_u32 s8, s8, {W-P}")
        e(f"    v_lshrrev_b32 v41, 5, v0"); e(f"    v_add_u32 v41, s8, v41")
        if rot is not None and len(rot) > 3 and rot[3] != 1: e(f"    v_mul_u32_u24 v41, {rot[3]}, v41")
        e(f"    v_add_u32 v41, s11, v41"); e(f"    v_and_b32 v41, 15, v41"); e(f"    v_lshlrev_b32 v41, 12, v41")
        e(f"    v_and_b32 v42, 31, v0"); e(f"    v_lshl_add_u32 v41, v42, 7, v41")
        e(f"    s_lshr_b32 s8, s2, 3"); e(f"    s_add_u32 s8, s8, s7")
        if mm == "odd":
            e(f"    s_and_b32 s8, s8, 3"); e(f"    s_lshl_b32 s8, s8, 1"); e(f"    s_or_b32 s8, s8, 1")
        elif mm == "one":
            e(f"    s_mov_b32 s8, 1")
        else:
            e(f"    s_and_b32 s8, s8, 7"); e(f"    s_max_u32 s8, s8, 1")
        e(f"    s_lshl_b32 s8, s8, 21"); e(f"    s_xor_b32 s8, s8, s{S_WG}")
        e(f"    s_cmp_lt_u32 s7, {NP}"); e(f"    s_cselect_b32 s8, s8, 0x1000000")
        e(f"    s_cmp_lt_u32 s62, 15"); e(f"    s_cselect_b32 s8, s8, 0x1000000")
    if gate:
        e(f"    s_cmp_lg_u32 s10, {gate.get('pw',0)}")
        e(f"    s_cbranch_scc1 L_gopen")
        e(f"    s_movk_i32 s63, {gate.get('max',64)}")
        if gate.get('scope','x') == 'x':
            e(f"    s_and_b32 s62, s62, 0xffe0")
            e("L_gpoll:")
            e(f"    s_load_dwordx8 s[88:95], s[36:37], s62 glc")
            e(f"    s_sub_u32 s63, s63, 1")
            e(f"    s_cbranch_scc1 L_gopen")
            e(f"    s_waitcnt lgkmcnt(0)")
            e(f"    s_bcnt1_i32_b64 s88, s[88:89]"); e(f"    s_bcnt1_i32_b64 s90, s[90:91]")
            e(f"    s_bcnt1_i32_b64 s92, s[92:93]"); e(f"    s_bcnt1_i32_b64 s94, s[94:95]")
            e(f"    s_add_u32 s88, s88, s90"); e(f"    s_add_u32 s92, s92, s94"); e(f"    s_add_u32 s88, s88, s92")
            e(f"    s_cmp_lt_u32 s88, {gate['n']}")
            e(f"    s_cbranch_scc1 L_gpoll")
        else:
            e("L_gpoll:")
            e(f"    s_sub_u32 s63, s63, 1")
            e(f"    s_cbranch_scc1 L_gopen")
            e(f"    s_mov_b32 s86, 0")
            for h in range(2):
                e(f"    s_load_dwordx16 s[64:79], s[36:37], {128*h} glc")
                e(f"    s_load_dwordx16 s[84:99], s[36:37], {128*h+64} glc".replace("s[84:99]","s[84:99]"))
                e(f"    s_waitcnt lgkmcnt(0)")
                raise NotImplementedError
        e("L_gopen:")
        e(f"    s_waitcnt lgkmcnt(0)")
    if polo is not None:
        e(f"    s_cmp_lg_u32 s62, {polo}"); e(f"    s_cbranch_scc1 L_po"); e(f"    s_setprio 2"); e(f"L_po:")
    if bub and bublate and "P" in bub:
        e(f"    s_cmp_lg_u32 s62, {polv}"); e(f"    s_cbranch_scc1 L_bbp")
        e(f"    s_waitcnt vmcnt(0)")
        e(f"L_bbp:")
    def bubv():
        if bub and bublate and "V" in bub:
            e(f"    s_cmp_ge_u32 s10, {bubreg['V']}"); e(f"    s_cbranch_scc1 L_bbl")
            e(f"    s_waitcnt vmcnt(0)")
            e(f"L_bbl:")
    if latepos == "I": bubv()
    if sync == "flag" and latebar and "I" in latepos:
        e(f"    s_barrier")
    if hlp is not None:
        e(f"    buffer_load_dword v43, v41, s[36:39], s8 offen")
    if storebar and storebar < W:
        if par is not None:
            e(f"    s_cmp_eq_u32 s9, 0"); e(f"    s_cselect_b32 s10, 31, s10")
        e(f"    s_cmp_lt_u32 s10, {storebar}")
        e(f"    s_cbranch_scc1 L_nob1")
        e(f"    s_barrier")
        e("L_nob1:")
    pos = {o: i for i, o in enumerate(order)}
    def vm(o): return 4*(2-pos[o]) + (1 if hlp is not None else 0)
    DP1 = "quad_perm:[1,0,3,2] row_mask:0xf bank_mask:0xf"
    DP2 = "quad_perm:[2,3,0,1] row_mask:0xf bank_mask:0xf"
    def transpose(R):
        T = VTMP
        e(f"    s_mov_b64 vcc, s[{S_M5}:{S_M5+1}]")
        for j0 in (0, 2):
            for x in range(4): e(f"    v_cndmask_b32_dpp v{T+4*j0+x}, v{R+4*(j0+1)+x}, v{R+4*j0+x}, vcc {DP1}")
        e(f"    s_mov_b64 vcc, s[{S_MA}:{S_MA+1}]")
        for j0 in (0, 2):
            for x in range(4): e(f"    v_cndmask_b32_dpp v{T+4*(j0+1)+x}, v{R+4*j0+x}, v{R+4*(j0+1)+x}, vcc {DP1}")
        e(f"    s_mov_b64 vcc, s[{S_M3}:{S_M3+1}]")
        for j0 in (0, 1):
            for x in range(4): e(f"    v_cndmask_b32_dpp v{R+4*j0+x}, v{T+4*(j0+2)+x}, v{T+4*j0+x}, vcc {DP2}")
        e(f"    s_mov_b64 vcc, s[{S_MC}:{S_MC+1}]")
        for j0 in (0, 1):
            for x in range(4): e(f"    v_cndmask_b32_dpp v{R+4*(j0+2)+x}, v{T+4*j0+x}, v{T+4*(j0+2)+x}, vcc {DP2}")
    def rdKp():
        for j in range(4): e(f"    ds_read_b128 {rng(VKP+4*j,4)}, v{V_KA+j}")
    def rdKc():
        for j in range(4): e(f"    ds_read_b128 {rng(VKC+4*j,4)}, v{V_KA+j} offset:8192")
    def rdVp():
        for r in range(4): e(f"    ds_read_b128 {rng(VVP+4*r,4)}, v{V_VA} offset:{4096+256*r}")
    def rdVc():
        for r in range(4): e(f"    ds_read_b128 {rng(VVC+4*r,4)}, v{V_VA} offset:{12288+256*r}")
    def publish(off):
        e(f"    s_mov_b64 exec, 1")
        e(f"    ds_write_b32 v{V_FO}, v{V_ONE} offset:{off}")
        e(f"    s_mov_b64 exec, -1")
    assert order in ("KQV", "QKV")
    if order == "QKV":
        e(f"    s_waitcnt vmcnt({vm('Q')})")
        transpose(VQ)
    e(f"    s_waitcnt vmcnt({vm('K')})")
    e("    ; STAMP 3")
    if latebar and "K" in latepos: bubv(); e(f"    s_barrier")
    if kbar:
        e(f"    s_cmp_eq_u32 s9, 1"); e(f"    s_cbranch_scc1 L_nokb"); e(f"    s_barrier"); e("L_nokb:")
    if sync == "flag":
        publish(0)
        e(f"    ds_read_b32 v{V_F}, v{V_FP}")
        rdKp(); rdKc()
    else:
        rdKc()
        if order == "QKV":
            e(f"    s_barrier"); rdKp()
    if order == "KQV":
        e(f"    s_waitcnt vmcnt({vm('Q')})")
        transpose(VQ)
        if sync != "flag":
            e(f"    s_barrier"); rdKp()
    e(f"    s_waitcnt lgkmcnt(0)")
    if sync == "flag":
        e(f"    v_readfirstlane_b32 s{S_F}, v{V_F}")
        e(f"    s_cmp_eq_u32 s{S_F}, 1")
        e(f"    s_cbranch_scc0 L_kspin")
        e("L_kok:")
    for j in range(4):
        csc = "0" if j == 0 else rng(V_SC, 4)
        csp = rng(V_CI, 4) if j == 0 else rng(V_SP, 4)
        e(f"    v_mfma_f32_16x16x32_bf16 {rng(V_SC,4)}, {rng(VKC+4*j,4)}, {rng(VQ+4*j,4)}, {csc}")
        e(f"    v_mfma_f32_16x16x32_bf16 {rng(V_SP,4)}, {rng(VKP+4*j,4)}, {rng(VQ+4*j,4)}, {csp}")
    e(f"    s_nop 7")
    softmax(e, V_T, V_A, V_B, V_SP, V_SC, V_P, V_M01, V_M23, S_MASK, S_HI16, S_SCALE, S_LOG2E, mimic)
    e("    ; STAMP 4")
    if latebar and "S" in latepos: bubv(); e(f"    s_barrier")
    e(f"    s_waitcnt vmcnt({vm('V')})")
    dowb('V')
    if latebar and "V" in latepos: e(f"    s_barrier")
    if sync == "flag":
        publish(4)
        rdVc()
        e(f"    ds_read_b32 v{V_F}, v{V_FP} offset:4")
        rdVp()
        e(f"    s_waitcnt lgkmcnt(5)")
    else:
        rdVc()
        e(f"    s_barrier")
        rdVp()
        e(f"    s_waitcnt lgkmcnt(4)")
    def perms(src, half):
        for m in range(4):
            for s, sel in ((0, S_PLO), (1, S_PHI)):
                tt = 2*m + s
                e(f"    v_perm_b32 v{VP+4*tt+half}, v{src+4+m}, v{src+m}, s{sel}")
                e(f"    v_perm_b32 v{VP+4*tt+half+1}, v{src+12+m}, v{src+8+m}, s{sel}")
    perms(VVC, 2)
    e(f"    s_waitcnt lgkmcnt(0)")
    if sync == "flag":
        e(f"    v_readfirstlane_b32 s{S_F}, v{V_F}")
        e(f"    s_cmp_eq_u32 s{S_F}, 1")
        e(f"    s_cbranch_scc0 L_vspin")
        e("L_vok:")
    perms(VVP, 0)
    e("    ; STAMP 5")
    e(f"    s_nop 1")
    for tt in range(8):
        e(f"    v_mfma_f32_16x16x32_bf16 {rng(VACC+4*tt,4)}, {rng(V_P,4)}, {rng(VP+4*tt,4)}, 0")
    e(f"    s_nop 7")
    vout = VQ
    if storebar:
        for r in range(4):
            for m in range(4):
                e(f"    v_cvt_pk_bf16_f32 v{vout+4*r+m}, v{VACC+4*(2*m)+r}, v{VACC+4*(2*m+1)+r}")
        if storebar < W:
            e(f"    s_cmp_ge_u32 s10, {storebar}")
            e(f"    s_cbranch_scc1 L_nob2")
        if sblo:
            e(f"    s_cmp_lt_u32 s10, {sblo}")
            e(f"    s_cbranch_scc1 L_nob2")
        e(f"    s_barrier")
        e("L_nob2:")
    def stores(pol):
        for r in range(4):
            for m in range(4):
                if not storebar: e(f"    v_cvt_pk_bf16_f32 v{vout+4*r+m}, v{VACC+4*(2*m)+r}, v{VACC+4*(2*m+1)+r}")
            if thr is not None and r > thr: e(f"    s_waitcnt vmcnt({thr})")
            e(f"    buffer_store_dwordx4 {rng(vout+4*r,4)}, v{V_VO}, s[{SO}:{SO+3}], s{S_CUR} offen offset:{256*r} {pol}".rstrip())
    if st2 is not None:
        e(f"    s_cmp_lt_u32 {'s10' if st2phys else 's3'}, {st2w}")
        e(f"    s_cbranch_scc1 L_st2")
        stores(st)
        e(f"    s_branch L_stdone")
        e("L_st2:")
        stores(st2)
        e("L_stdone:")
    else:
        stores(st)
    if hlp is not None: e(f"    s_waitcnt vmcnt(4)")
    dowb('E')
    e("    ; STAMP 6")
    e("L_end:")
    e("L_exit:")
    e("    s_endpgm")
    if sync == "flag":
        for nm, off, rd in (("k", 0, rdKp), ("v", 4, rdVp)):
            e(f"L_{nm}spin:")
            if sleep: e(f"    s_sleep 1")
            e(f"    ds_read_b32 v{V_F}, v{V_FP} offset:{off}")
            e(f"    s_waitcnt lgkmcnt(0)")
            e(f"    v_readfirstlane_b32 s{S_F}, v{V_F}")
            e(f"    s_cmp_eq_u32 s{S_F}, 1")
            e(f"    s_cbranch_scc0 L_{nm}spin")
            rd()
            e(f"    s_waitcnt lgkmcnt(0)")
            e(f"    s_branch L_{nm}ok")
    e("L_codeend:")
    e('.section .rodata,"a"')
    e(".p2align 6")
    e(f".amdhsa_kernel {NAME}_kernel")
    e(f"  .amdhsa_next_free_vgpr {nvgpr}")
    e(f"  .amdhsa_next_free_sgpr {96 if gate else 64}")
    e(f"  .amdhsa_accum_offset {(nvgpr+3)//4*4}")
    e(f"  .amdhsa_group_segment_fixed_size 0")
    e(f"  .amdhsa_kernarg_size 56")
    e(f"  .amdhsa_user_sgpr_count 2")
    e(f"  .amdhsa_user_sgpr_kernarg_segment_ptr 1")
    e(f"  .amdhsa_system_sgpr_workgroup_id_x 1")
    e(f"  .amdhsa_float_denorm_mode_32 3")
    e(f".end_amdhsa_kernel")
    s = "\n".join(L) + "\n"
    if stamps: s = stamp.add_stamps(s)
    else: s = "\n".join(l for l in s.split("\n") if "; STAMP" not in l)
    return s
```

```python
import sys; sys.path.insert(0,'gen')
import gen3
B=dict(W=16,fh="",flast="",sleep=False,order="QKV",rot=(3,5),latebar=True,st="sc1",barafter="QK",halov=True)
V={'g_V8_0':dict(bub=dict(V=(8,0))),
   'g_V12_0':dict(bub=dict(V=(12,0))),
   'g_V16_0':dict(bub=dict(V=(16,0))),
   'g_V5_0':dict(bub=dict(V=(5,0))),
   'g_V12_4':dict(bub=dict(V=(12,4))),
   'g_hkV8_0':dict(bub=dict(V=(8,0)),halok=True),
}
names=[]
for k,a in V.items():
    s=gen3.gen(**{**B,**a})
    s="\n".join(l for l in s.split("\n") if not l.startswith("L_codeend:"))
    open(f'p/{k}.s','w').write(s); names.append(k)
print(" ".join(f"p/{k}.s" for k in names))
```

```python
import sys; sys.path.insert(0,'gen')
import gen3
B=dict(W=16,fh="",flast="",sleep=False,order="QKV",rot=(3,5),latebar=True,st="nt",barafter="QK",halov=True,bub=dict(V=(8,0)))
V={'n_base':dict(),'n_nobub':dict(bub=None),'n_nolate':dict(bub=None,latebar=False),'n_K':dict(latepos="K"),'n_S':dict(latepos="S"),
   'n_Knb':dict(latepos="K",bub=None),'n_Snb':dict(latepos="S",bub=None),'n_V4_0':dict(bub=dict(V=(4,0))),'n_V12_4':dict(bub=dict(V=(12,4))),
   'n_nobar':dict(bub=None,barafter="Q",latebar=False),'n_sc0nt':dict(st="sc0 nt"),
}
names=[]
for k,a in V.items():
    s=gen3.gen(**{**B,**a})
    s="\n".join(l for l in s.split("\n") if not l.startswith("L_codeend:"))
    open(f'p/{k}.s','w').write(s); names.append(k)
print(" ".join(f"p/{k}.s" for k in names))
```

```python
import sys; sys.path.insert(0,'gen')
import gen3
B=dict(W=16,fh="",flast="",sleep=False,order="QKV",rot=(3,5),latebar=True,st="nt",barafter="QK",halov=True,bub=dict(V=(8,0)))
V={'n_V8_4':dict(bub=dict(V=(8,4))),'n_V6_2':dict(bub=dict(V=(6,2))),'n_V6_0':dict(bub=dict(V=(6,0))),'n_V10_0':dict(bub=dict(V=(10,0))),
   'n_V4_4':dict(bub=dict(V=(4,4))),'n_V8_8':dict(bub=dict(V=(8,8))),'n_hk':dict(halok=True),'n_S12_8':dict(latepos="S",bub=dict(V=(12,8))),
   'n_S16_12':dict(latepos="S",bub=dict(V=(16,12))),'n_S16_16':dict(latepos="S",bub=dict(V=(16,16))),'n_S12_12':dict(latepos="S",bub=dict(V=(12,12))),
   'n_sb16':dict(storebar=16,bub=None,latebar=False),
}
names=[]
for k,a in V.items():
    s=gen3.gen(**{**B,**a})
    s="\n".join(l for l in s.split("\n") if not l.startswith("L_codeend:"))
    open(f'p/{k}.s','w').write(s); names.append(k)
print(" ".join(f"p/{k}.s" for k in names))
```

```python
import sys; sys.path.insert(0,'gen')
import gen3, offstat
B=dict(W=16,fh="nt",flast=None,sleep=False,order="QKV",rot=(3,1),latebar=True,st="nt",barafter="QK",halov=True,halok=True,bub=dict(V=(8,0)))
K=dict(order="KQV",barafter="KQ")
V={'a_r1':dict(),'a_r1k':dict(K),'a_r1nb':dict(bub=None),'a_r1V8_4':dict(bub=dict(V=(8,4))),'a_r1V10_4':dict(bub=dict(V=(10,4))),'a_r1V12_4':dict(bub=dict(V=(12,4))),
   'a_kV10_4':dict(K,bub=dict(V=(10,4))),'a_kV12_4':dict(K,bub=dict(V=(12,4))),'a_kV12_8':dict(K,bub=dict(V=(12,8))),'a_kV10_0':dict(K,bub=dict(V=(10,0))),'a_kV8_4':dict(K,bub=dict(V=(8,4))),
   'a_kV14_6':dict(K,bub=dict(V=(14,6))),
}
names=[]
for k,a in V.items():
    s=gen3.gen(**{**B,**a})
    s="\n".join(l for l in s.split("\n") if not l.startswith("L_codeend:"))
    open(f'p/{k}.s','w').write(s); names.append(k)
    open(f'os_{k}.s','w').write(offstat.wrap(s))
print(" ".join(f"p/{k}.s" for k in names))
```
